```python
import torch

def _softmax(x, axis=-1):
    return torch.softmax(x, dim=axis)
def _gelu(x):
    return torch.nn.functional.gelu(x, approximate="tanh")
def _silu(x):
    return torch.nn.functional.silu(x)
def _sigmoid(x):
    return torch.sigmoid(x)
def _layernorm(x, axis=-1, eps=1e-5):
    m = x.mean(dim=axis, keepdim=True)
    v = x.var(dim=axis, keepdim=True, unbiased=False)
    return (x - m) / torch.sqrt(v + eps)
def _scatter_add(tgt, idx, src, axis=0):
    return tgt.clone().index_add_(axis, idx, src)
def _segment_sum(src, seg, n):
    out = torch.zeros((n,) + src.shape[1:], dtype=src.dtype)
    return out.index_add_(0, seg, src)
def _pad(x, pw):
    flat = tuple(v for pair in reversed(pw) for v in pair)
    return torch.nn.functional.pad(x, flat)

kernel_name = 'parallel_sum__sliding_block_cached__dense_activation_silu__decode'

def setup_inputs():

    _w = (lambda a: (lambda t: t.to(torch.bfloat16) if t.is_floating_point() else t)(torch.as_tensor(a)))
    def _A_setup():
        B, Sq, D = 4, 1, 512
        Hq, Hkv, Sk, Dh = 32, 32, 8192, 128
        assert Hq % Hkv == 0, (Hq, Hkv)
        return {
            "x": _w((lambda *s: torch.randn(*s, dtype=torch.bfloat16) * 0.05)(B, Sq, D)),
            "k_cache": _w((lambda *s: torch.randn(*s, dtype=torch.bfloat16) * 3.2)(B, Hkv, Sk, Dh)),
            "v_cache": _w((lambda *s: torch.randn(*s, dtype=torch.bfloat16) * 0.8)(B, Hkv, Sk, Dh)),
            "wq": _w((lambda *s: torch.randn(*s, dtype=torch.bfloat16) * 3.2)(D, Hq * Dh) * (D ** -0.5)),
            "wo": _w((lambda *s: torch.randn(*s, dtype=torch.bfloat16) * 0.8)(Hq * Dh, D) * ((Hq * Dh) ** -0.5)),
        }
    _A_in = _A_setup()

    def _B_setup():
        B, S, D, F = 4, 1, 512, 1376
        return {
            "x": _w((lambda *s: torch.randn(*s, dtype=torch.bfloat16) * 0.05)(B, S, D)),
            "w1": _w((lambda *s: torch.randn(*s, dtype=torch.bfloat16) * 3.2)(D, F) * (D ** -0.5)),
            "w2": _w((lambda *s: torch.randn(*s, dtype=torch.bfloat16) * 0.4)(F, D) * (F ** -0.5)),
        }
    _B_in = _B_setup()

    return {
        "A_x": _A_in["x"],
        "A_k_cache": _A_in["k_cache"],
        "A_v_cache": _A_in["v_cache"],
        "A_wq": _A_in["wq"],
        "A_wo": _A_in["wo"],
        "B_x": _B_in["x"],
        "B_w1": _B_in["w1"],
        "B_w2": _B_in["w2"],
    }

def reference(A_x, A_k_cache, A_v_cache, A_wq, A_wo, B_x, B_w1, B_w2):
    def _A_ref(x, k_cache, v_cache, wq, wo):
        B, Sq, D = x.shape
        Hq, Dh = 32, 128
        Hkv, Sk = k_cache.shape[1], k_cache.shape[2]
        W = min(4096, max(256, Sk // 4))
        rep = Hq // Hkv
        q = (lambda x, *d: x.permute(*d))((x @ wq).reshape(B, Sq, Hq, Dh), 0, 2, 1, 3)
        k = (lambda x, n, axis: torch.repeat_interleave(x, n, dim=axis))(k_cache[:, :, Sk - W:, :], rep, axis=1)
        v = (lambda x, n, axis: torch.repeat_interleave(x, n, dim=axis))(v_cache[:, :, Sk - W:, :], rep, axis=1)
        scores = torch.einsum("bhqd,bhkd->bhqk", q, k) * (Dh ** -0.5)
        p = _softmax(scores, axis=-1)
        o = torch.einsum("bhqk,bhkd->bhqd", p, v)
        return (lambda x, *d: x.permute(*d))(o, 0, 2, 1, 3).reshape(B, Sq, Hq * Dh) @ wo

    def _B_ref(x, w1, w2):
        h = torch.einsum("bsd,df->bsf", x, w1)
        h = _silu(h)
        out = torch.einsum("bsf,fd->bsd", h, w2)
        return out

    x = A_x
    xn = _layernorm(x, axis=-1)
    return x + _A_ref(xn, A_k_cache, A_v_cache, A_wq, A_wo) + _B_ref(xn, B_w1, B_w2)
```

```python
import re

TRANS = ("v_exp_f32", "v_log_f32", "v_rcp_f32", "v_rsq_f32", "v_sqrt_f32", "v_sin_f32", "v_cos_f32",
         "v_rcp_iflag_f32", "v_exp_f16", "v_rcp_f16")

def _regs(tok):
    tok = tok.strip()
    neg = tok
    tok = tok.lstrip("-")
    m = re.fullmatch(r"abs\((.*)\)", tok) or re.fullmatch(r"\|(.*)\|", tok)
    if m: tok = m.group(1)
    m = re.fullmatch(r"([vsa])(\d+)", tok)
    if m: return [(m.group(1), int(m.group(2)))]
    m = re.fullmatch(r"([vsa])\[(\d+):(\d+)\]", tok)
    if m: return [(m.group(1), i) for i in range(int(m.group(2)), int(m.group(3)) + 1)]
    if tok in ("vcc", "vcc_lo", "vcc_hi"): return [("vcc", 0)]
    if tok in ("exec", "exec_lo", "exec_hi"): return [("exec", 0)]
    if tok == "m0": return [("m0", 0)]
    return []

class Ins:
    def __init__(self, text):
        self.text = text
        t = text.split(";")[0].strip()
        self.label = t.endswith(":")
        self.empty = (t == "") or t.startswith(".")
        if self.label or self.empty:
            self.op = ""; self.dst = []; self.src = []; self.ops = []
            return
        parts = t.split(None, 1)
        self.op = parts[0]
        rest = parts[1] if len(parts) > 1 else ""
        ops = []; cur = ""; depth = 0
        for ch in rest:
            if ch == "[": depth += 1
            if ch == "]": depth -= 1
            if ch == "," and depth == 0:
                ops.append(cur); cur = ""
            else:
                cur += ch
        if cur.strip(): ops.append(cur)
        mods = ""
        clean = []
        for o in ops:
            o = o.strip()
            sp = o.split(None, 1)
            clean.append(sp[0] if sp else "")
            if len(sp) > 1: mods += " " + sp[1]
        self.ops = clean
        self.mods = mods
        op = self.op
        self.is_valu = op.startswith("v_")
        self.is_salu = op.startswith("s_")
        self.is_ds = op.startswith("ds_")
        self.is_vmem = op.startswith(("buffer_", "global_", "flat_", "scratch_"))
        self.is_dpp = self.is_valu and (op.endswith("_dpp") or "row_" in mods or "quad_perm" in mods)
        self.is_perm = op.startswith("v_permlane")
        self.is_trans = any(op.startswith(x) for x in TRANS)
        self.is_dot = op.startswith("v_dot")
        self.is_mfma = op.startswith("v_mfma")
        self.is_sdwa = op.endswith("_sdwa") or "dst_sel" in mods
        self.is_readlane = op.startswith(("v_readlane", "v_readfirstlane", "v_writelane"))
        dst = []; src = []
        R = [_regs(o) for o in clean]
        if self.is_valu:
            if op.startswith("v_cmp"):
                dst = R[0]; src = sum(R[1:], [])
                if op.startswith("v_cmpx"): dst = dst + [("exec", 0)]
            elif self.is_perm and "swap" in op:
                dst = R[0] + R[1]; src = R[0] + R[1]
            elif op.startswith(("v_add_co", "v_sub_co", "v_addc_co", "v_subb_co", "v_div_scale", "v_mad_u64_u32")):
                dst = R[0] + R[1]; src = sum(R[2:], [])
            else:
                dst = R[0]; src = sum(R[1:], [])
                if op.startswith(("v_fmac", "v_dot2c", "v_pk_fmac", "v_writelane", "v_mac")) or self.is_dpp:
                    src = src + R[0]
                if op.startswith("v_cndmask") and len(clean) == 3:
                    src = src + [("vcc", 0)]
                if op.startswith("v_div_fmas"):
                    src = src + [("vcc", 0)]
        elif self.is_ds:
            if op.startswith(("ds_read", "ds_bpermute", "ds_permute", "ds_swizzle")):
                dst = R[0]; src = sum(R[1:], [])
            else:
                src = sum(R, [])
        elif self.is_vmem:
            if "store" in op or ("atomic" in op and "sc0" not in mods) or op.startswith("buffer_inv") or op.startswith("buffer_wbl2"):
                src = sum(R, [])
            elif "lds" in mods.split():
                src = sum(R, [])
            else:
                dst = R[0]; src = sum(R[1:], [])
                if "atomic" in op: src = sum(R, [])
        elif self.is_salu:
            if op.startswith(("s_cmp", "s_cbranch", "s_branch", "s_waitcnt", "s_nop", "s_barrier", "s_endpgm", "s_sleep", "s_setprio", "s_bitcmp")):
                src = sum(R, [])
            else:
                dst = R[0] if R else []; src = sum(R[1:], []) if R else []
                if "saveexec" in op: dst = dst + [("exec", 0)]
        self.dst = dst; self.src = src

    def states(self):
        if self.label or self.empty: return 0
        if self.op == "s_nop": return int(self.ops[0], 0) + 1
        return 1

def need(prod, cons):
    n = 0
    if prod.label or prod.empty or cons.label or cons.empty: return 0
    pd = set(prod.dst)
    pv = {r for r in pd if r[0] in "va" and r[0] != "vcc"}
    pv = {r for r in pd if r[0] in ("v", "a")}
    ps = {r for r in pd if r[0] in ("s", "vcc")}
    cs = set(cons.src); cd = set(cons.dst)
    if prod.is_valu:
        hit_v = pv & cs
        if hit_v:
            if cons.is_dpp and (pv & set(_regs(cons.ops[1]))):
                n = max(n, 2)
            if cons.is_perm: n = max(n, 2)
            if cons.is_readlane: n = max(n, 1)
            if cons.is_mfma and not prod.is_mfma: n = max(n, 2)
            if prod.is_trans and not cons.is_trans: n = max(n, 1)
            if prod.is_sdwa: n = max(n, 1)
        if prod.is_dot:
            if (pv & cs) or (pv & cd):
                if cons.op == prod.op or (cons.op.replace("_dpp", "") == prod.op.replace("_dpp", "")):
                    if cons.op.startswith("v_dot2c"):
                        ab = set(sum([_regs(o) for o in cons.ops[1:3]], []))
                    else:
                        ab = set(sum([_regs(o) for o in cons.ops[1:3]], []))
                    if pv & ab: n = max(n, 3)
                else:
                    n = max(n, 3)
        if prod.is_mfma:
            passes = 8 if "32x32" in prod.op else 4
            if (pv & cs) or (pv & cd):
                if cons.is_mfma:
                    c = set(_regs(cons.ops[3])); ab = set(_regs(cons.ops[1]) + _regs(cons.ops[2]))
                    if pv & ab: n = max(n, {4: 8, 8: 12}[passes])
                    elif pv & c and c != pv: n = max(n, {4: 6, 8: 10}[passes])
                else:
                    n = max(n, {4: 8, 8: 12}[passes])
        if ps:
            hit_s = ps & cs
            if hit_s:
                if cons.is_vmem: n = max(n, 5)
                elif cons.is_readlane: n = max(n, 4)
                elif cons.op.startswith("v_div_fmas"): n = max(n, 4)
                elif cons.is_valu: n = max(n, 2)
                elif cons.is_salu: n = max(n, 4)
        if ("exec", 0) in pd:
            if cons.is_dpp: n = max(n, 5)
            elif cons.is_readlane or cons.is_perm or cons.is_mfma: n = max(n, 4)
            elif cons.is_valu: n = max(n, 2)
    if prod.is_mfma and cons.is_valu and not cons.is_mfma:
        c = set(_regs(prod.ops[3]))
        if c & cd: n = max(n, 7 if "32x32" in prod.op else 3)
    if prod.is_vmem and ("store" in prod.op or "atomic" in prod.op) and ("x3" in prod.op or "x4" in prod.op or "cmpswap_x2" in prod.op):
        if cons.is_valu and (set(prod.src) & cd & {r for r in cd if r[0] == "v"}): n = max(n, 2)
    if prod.is_salu:
        if ("m0", 0) in pd and (cons.is_vmem and "lds" in cons.mods.split()): n = max(n, 1)
        if ("exec", 0) in pd and cons.is_dpp: n = max(n, 0)
    return n

class Asm:
    def __init__(self):
        self.lines = []
    def __call__(self, s):
        for l in s.split("\n"):
            l = l.strip()
            if l: self.lines.append(l)
    def c(self, s):
        self.lines.append("; " + s)
    def text(self, pad=True):
        ins = [Ins(l) if not l.startswith(";") else None for l in self.lines]
        out = []; hist = []
        nnop = 0
        for l, i in zip(self.lines, ins):
            if i is None:
                out.append(l); continue
            if i.label:
                out.append(l); continue
            if i.empty:
                out.append(l); continue
            if pad:
                req = 0; dist = 0
                for p in reversed(hist):
                    k = need(p, i)
                    if k > dist: req = max(req, k - dist)
                    dist += p.states()
                    if dist > 20: break
                if req > 0:
                    nop = Ins(f"s_nop {req-1}")
                    out.append(nop.text); hist.append(nop); nnop += 1
            out.append("  " + l); hist.append(i)
        self.nnop = nnop
        return "\n".join(out) + "\n"
```

```python
import sys
from asmlib import Asm

NAME = "parallel_sum__sliding_block_cached__dense_activation_silu__decode"
HEADER = """; Kernarg layout for this problem (88 bytes, ptrs only, base s[0:1]):
"""

class VM:
    def __init__(self, A):
        self.A = A; self.q = []; self.log = []
    def issue(self, name, text):
        self.A(text); self.q.append(name); self.log.append(name)
    def wait(self, name):
        if name not in self.q: return
        idx = max(i for i, n in enumerate(self.q) if n == name)
        n = len(self.q) - 1 - idx
        assert n <= 63, n
        self.A(f"s_waitcnt vmcnt({n})")
        self.q = self.q[idx + 1:]
    def outstanding(self): return len(self.q)

STAMP_REGS = [74,75,76,77,78,79,94,95,96,97,98,99]
DPPM = "row_mask:0xf bank_mask:0xf"

def acc8(A, acc, lo, hi, data, dpp):
    for r in range(4):
        A(f"v_dot2c_f32_bf16_dpp v{acc+2*r}, v{lo}, v{data+r} {dpp} {DPPM}")
        A(f"v_dot2c_f32_bf16_dpp v{acc+2*r+1}, v{hi}, v{data+r} {dpp} {DPPM}")

def zero(A, base, n):
    for i in range(n): A(f"v_mov_b32 v{base+i}, 0")

def greduce(A, acc):
    for e in range(4): A(f"v_permlane32_swap_b32 v{acc+e}, v{acc+e+4}")
    for e in range(4): A(f"v_add_f32 v{acc+e}, v{acc+e}, v{acc+e+4}")
    for e in range(2): A(f"v_permlane16_swap_b32 v{acc+e}, v{acc+e+2}")
    for e in range(2): A(f"v_add_f32 v{acc+e}, v{acc+e}, v{acc+e+2}")

def wave_reduce(A, v, op, sdst):
    for d in ("quad_perm:[1,0,3,2]", "quad_perm:[2,3,0,1]", "row_half_mirror", "row_mirror"):
        A(f"{op}_dpp v{v}, v{v}, v{v} {d} {DPPM}")
    A(f"{op}_dpp v{v}, v{v}, v{v} row_bcast:15 row_mask:0xa bank_mask:0xf")
    A(f"{op}_dpp v{v}, v{v}, v{v} row_bcast:31 row_mask:0xc bank_mask:0xf")
    A(f"v_readlane_b32 s{sdst}, v{v}, 63")

def treduce(A, P, tmp, dst):
    for u in range(8): A(f"v_add_f32_dpp v{P+u}, v{P+u}, v{P+u} row_ror:8 row_mask:0xf bank_mask:0x3")
    for u in range(8): A(f"v_add_f32_dpp v{P+u}, v{P+u+8}, v{P+u+8} row_ror:8 row_mask:0xf bank_mask:0xc")
    for u in range(4): A(f"v_add_f32_dpp v{P+u}, v{P+u}, v{P+u} row_shl:4 row_mask:0xf bank_mask:0x5")
    for u in range(4): A(f"v_add_f32_dpp v{P+u}, v{P+u+4}, v{P+u+4} row_shr:4 row_mask:0xf bank_mask:0xa")
    for u in range(4): A(f"v_add_f32_dpp v{P+u}, v{P+u}, v{P+u} quad_perm:[2,3,0,1] {DPPM}")
    for u in range(2): A(f"v_cndmask_b32 v{P+u}, v{P+u}, v{P+u+2}, s[72:73]")
    for u in range(2): A(f"v_add_f32_dpp v{P+u}, v{P+u}, v{P+u} quad_perm:[1,0,3,2] {DPPM}")
    A(f"v_cndmask_b32 v{dst}, v{P}, v{P+1}, s[70:71]")

def bf16r(A, dst, src):
    A(f"v_cvt_pk_bf16_f32 v{dst}, v{src}, v{src}")
    A(f"v_lshlrev_b32 v{dst}, 16, v{dst}")

XN = 0
QP = 1024
HP = QP + 4096
MW = HP + 1024
LW = MW + 64
OP = LW + 64
YP = OP + 4096
YF = YP + 16384
LDS_TOTAL = YF + 16384

WS_YA = 0
WS_YF = 0x80000
WS_ML = 0x100000

def srd(A, d, ptr, off_s, nrec):
    if off_s is None:
        A(f"s_mov_b32 s{d}, s{ptr}")
        A(f"s_and_b32 s{d+1}, s{ptr+1}, 0xffff")
    else:
        A(f"s_add_u32 s{d}, s{ptr}, s{off_s}")
        A(f"s_addc_u32 s{d+1}, s{ptr+1}, 0")
        A(f"s_and_b32 s{d+1}, s{d+1}, 0xffff")
    A(f"s_mov_b32 s{d+2}, {nrec}")
    A(f"s_mov_b32 s{d+3}, 0x20000")

def gen_main(LD="nt", WLD="nt", stamps=False):
    A = Asm(); vm = VM(A)
    accA, accB, Q, XL, XH, HL, HH = 16, 24, 32, 36, 37, 38, 39
    R0, R1, PL0, PH0, PL1, PH1 = 40, 41, 42, 43, 44, 45
    P, W, TLO, THI, Z = 48, 64, 80, 144, 208
    vKV, vWQ, vW1, vW2, vWO = 2, 3, 4, 5, 6
    K_, V_, WQ_, W1_, W2_, WO_, X_, WS_ = 28, 32, 36, 40, 44, 48, 52, 56
    sB, sH, sS, sU, sW = 60, 61, 62, 63, 64
    def stamp(i):
        if not stamps: return
        A(f"s_memtime s[90:91]")
        A("s_waitcnt lgkmcnt(0)")
        A(f"s_sub_u32 s{STAMP_REGS[i]}, s90, s92")
    A("s_cmp_ge_u32 s2, 256")
    A("s_cbranch_scc1 L_main_end")
    if stamps:
        A("s_memtime s[92:93]")
    A("s_load_dwordx16 s[4:19], s[0:1], 0")
    A("s_load_dwordx4 s[20:23], s[0:1], 64")
    A("s_load_dwordx2 s[24:25], s[0:1], 80")
    A("s_and_b32 s65, s2, 7")
    A("s_lshr_b32 s66, s2, 3")
    A("s_lshr_b32 s67, s66, 3")
    A("s_lshl_b32 s67, s67, 3")
    A(f"s_add_u32 s{sH}, s67, s65")
    A("s_and_b32 s67, s66, 7")
    A(f"s_lshr_b32 s{sB}, s67, 1")
    A(f"s_and_b32 s{sS}, s66, 1")
    A(f"s_lshl_b32 s67, s{sS}, 5")
    A(f"s_add_u32 s{sU}, s67, s{sH}")
    A("v_and_b32 v1, 63, v0")
    A("v_lshrrev_b32 v7, 6, v0")
    A(f"v_readfirstlane_b32 s{sW}, v7")
    A("v_lshlrev_b32 v8, 4, v1")
    A("v_lshrrev_b32 v9, 4, v1")
    A("v_and_b32 v10, 15, v1")
    A("v_and_b32 v11, 1, v1")
    A("v_cmp_ne_u32 s[70:71], 0, v11")
    A("v_and_b32 v11, 2, v1")
    A("v_cmp_ne_u32 s[72:73], 0, v11")
    A(f"v_lshl_add_u32 v{vKV}, v7, 15, v8")
    A("v_lshl_add_u32 v11, v7, 6, v9")
    A("v_lshlrev_b32 v11, 13, v11")
    A(f"v_lshl_add_u32 v{vWQ}, v10, 4, v11")
    A("v_lshrrev_b32 v11, 2, v1")
    A("v_lshl_add_u32 v11, v7, 6, v11")
    A("v_mul_u32_u24 v11, 2752, v11")
    A("v_and_b32 v12, 3, v1")
    A(f"v_lshl_add_u32 v{vW1}, v12, 4, v11")
    A(f"v_lshl_add_u32 v{vW2}, v7, 12, v8")
    A(f"v_lshl_add_u32 v{vWO}, v7, 14, v8")
    A("s_waitcnt lgkmcnt(0)")
    A(f"s_lshl_b32 s65, s{sB}, 10")
    srd(A, X_, 4, 65, 1024)
    vm.issue("x", f"buffer_load_dwordx4 v[{P}:{P+3}], v8, s[{X_}:{X_+3}], 0 offen")
    A(f"s_lshl_b32 s65, s{sH}, 8")
    A(f"s_sub_u32 s66, {512*8192}, s65")
    srd(A, WQ_, 10, 65, "s66")
    A("s_mov_b32 s68, 0")
    for t in range(16):
        r = THI + 4 * t
        vm.issue(f"wq{t}", f"buffer_load_dwordx4 v[{r}:{r+3}], v{vWQ}, s[{WQ_}:{WQ_+3}], s68 offen {WLD}")
        if t < 15: A("s_add_u32 s68, s68, 32768")
    A(f"s_lshl_b32 s65, s{sU}, 6")
    A(f"s_sub_u32 s66, {512*2752}, s65")
    A(f"s_cmp_lt_u32 s{sU}, 43")
    A("s_cselect_b32 s66, s66, 0")
    A("s_cselect_b32 s65, s65, 0")
    srd(A, W1_, 16, 65, "s66")
    A("s_mov_b32 s68, 0")
    for i in range(4):
        r = W + 4 * i
        vm.issue(f"w1{i}", f"buffer_load_dwordx4 v[{r}:{r+3}], v{vW1}, s[{W1_}:{W1_+3}], s68 offen {WLD}")
        if i < 3: A(f"s_add_u32 s68, s68, {16*2752}")
    A(f"s_lshl_b32 s65, s{sB}, 5")
    A(f"s_add_u32 s65, s65, s{sH}")
    A("s_lshl_b32 s65, s65, 21")
    A(f"s_lshl_b32 s66, s{sS}, 18")
    A("s_add_u32 s65, s65, s66")
    A(f"s_add_u32 s65, s65, {6144*256}")
    srd(A, K_, 6, 65, 262144)
    srd(A, V_, 8, 65, 262144)
    for i in range(8): A(f"s_mov_b32 s{80+i}, {i*4096}")
    def kvload(name, srd_, t, reg):
        vm.issue(name, f"buffer_load_dwordx4 v[{reg}:{reg+3}], v{vKV}, s[{srd_}:{srd_+3}], s{80+t//4} offen offset:{(t%4)*1024} {LD}")
    for t in range(16): kvload(f"k{t}", K_, t, TLO + 4 * t)
    A(f"s_lshl_b32 s65, s{sU}, 15")
    A(f"s_cmp_lt_u32 s{sU}, 43")
    A("s_cselect_b32 s66, 32768, 0")
    A("s_cselect_b32 s65, s65, 0")
    srd(A, W2_, 18, 65, "s66")
    A(f"s_lshl_b32 s65, s{sH}, 17")
    srd(A, WO_, 12, 65, 131072)
    srd(A, WS_, 24, None, 0x200000)
    stamp(0)
    A.c("layernorm")
    vm.wait("x")
    F = P + 4
    for i in range(4):
        A(f"v_lshlrev_b32 v{F+2*i}, 16, v{P+i}")
        A(f"v_and_b32 v{F+2*i+1}, 0xffff0000, v{P+i}")
    t0 = P + 12
    A(f"v_add_f32 v{t0}, v{F}, v{F+1}")
    for i in range(2, 8): A(f"v_add_f32 v{t0}, v{t0}, v{F+i}")
    wave_reduce(A, t0, "v_add_f32", 65)
    A(f"v_mov_b32 v{t0+1}, s65")
    A(f"v_mul_f32 v{t0+1}, 0x3b000000, v{t0+1}")
    A(f"v_sub_f32 v{t0+2}, v{F}, v{t0+1}")
    A(f"v_mul_f32 v{t0}, v{t0+2}, v{t0+2}")
    for i in range(1, 8):
        A(f"v_sub_f32 v{t0+2}, v{F+i}, v{t0+1}")
        A(f"v_fmac_f32 v{t0}, v{t0+2}, v{t0+2}")
    wave_reduce(A, t0, "v_add_f32", 65)
    A(f"v_mov_b32 v{t0+2}, s65")
    A(f"v_mul_f32 v{t0+2}, 0x3b000000, v{t0+2}")
    bf16r(A, t0 + 1, t0 + 1)
    bf16r(A, t0 + 2, t0 + 2)
    A(f"v_add_f32 v{t0+2}, 0x3727c5ac, v{t0+2}")
    bf16r(A, t0 + 2, t0 + 2)
    A(f"v_sqrt_f32 v{t0+2}, v{t0+2}")
    bf16r(A, t0 + 2, t0 + 2)
    A(f"v_rcp_f32 v{t0+3}, v{t0+2}")
    for i in range(8): A(f"v_sub_f32 v{F+i}, v{F+i}, v{t0+1}")
    for i in range(0, 8, 2):
        A(f"v_cvt_pk_bf16_f32 v{P+i//2}, v{F+i}, v{F+i+1}")
    for i in range(4):
        A(f"v_lshlrev_b32 v{F+2*i}, 16, v{P+i}")
        A(f"v_and_b32 v{F+2*i+1}, 0xffff0000, v{P+i}")
    zt = Z
    for i in range(8): A(f"v_mul_f32 v{zt+i}, v{F+i}, v{t0+3}")
    for i in range(8): A(f"v_fma_f32 v{F+i}, -v{zt+i}, v{t0+2}, v{F+i}")
    for i in range(8): A(f"v_fmac_f32 v{zt+i}, v{F+i}, v{t0+3}")
    for i in range(0, 8, 2): A(f"v_cvt_pk_bf16_f32 v{P+i//2}, v{zt+i}, v{zt+i+1}")
    A(f"ds_write_b128 v8, v[{P}:{P+3}] offset:{XN}")
    A("v_lshlrev_b32 v11, 2, v10")
    A("v_add_u32 v11, v11, v9")
    A("v_lshl_add_u32 v11, v7, 6, v11")
    A("v_lshlrev_b32 v11, 1, v11")
    A("v_and_b32 v12, 3, v1")
    A("v_lshlrev_b32 v12, 4, v12")
    A("v_lshrrev_b32 v13, 2, v1")
    A("v_add_u32 v12, v12, v13")
    A("v_lshl_add_u32 v12, v7, 6, v12")
    A("v_lshlrev_b32 v12, 1, v12")
    A("s_waitcnt lgkmcnt(0)")
    A(f"ds_read_u16 v{XL}, v11 offset:{XN}")
    A(f"ds_read_u16 v{HL}, v12 offset:{XN}")
    zero(A, accA, 8); zero(A, accB, 8)
    A("s_waitcnt lgkmcnt(0)")
    A(f"v_lshlrev_b32 v{XH}, 16, v{XL}")
    A(f"v_lshlrev_b32 v{HH}, 16, v{HL}")
    stamp(1)
    A.c("q projection")
    for t in range(16):
        vm.wait(f"wq{t}")
        acc8(A, accA, XL, XH, THI + 4 * t, f"row_newbcast:{t}")
    for i in range(4):
        vm.wait(f"w1{i}")
        acc8(A, accB, HL, HH, W + 4 * i, f"quad_perm:[{i},{i},{i},{i}]")
    for t in range(16, 32): kvload(f"k{t}", K_, t, THI + 4 * (t - 16))
    for i in range(4):
        r = W + 4 * i
        vm.issue(f"w2{i}", f"buffer_load_dwordx4 v[{r}:{r+3}], v{vW2}, s[{W2_}:{W2_+3}], 0 offen offset:{i*1024} {WLD}")
    greduce(A, accA)
    greduce(A, accB)
    for e in range(2): A(f"v_add_f32_dpp v{accB+e}, v{accB+e}, v{accB+e} row_ror:4 {DPPM}")
    for e in range(2): A(f"v_add_f32_dpp v{accB+e}, v{accB+e}, v{accB+e} row_ror:8 {DPPM}")
    A("v_lshlrev_b32 v11, 5, v10")
    A("v_lshl_add_u32 v11, v9, 3, v11")
    A("v_lshl_add_u32 v14, v7, 9, v11")
    A(f"ds_write_b64 v14, v[{accA}:{accA+1}] offset:{QP}")
    A("v_and_b32 v12, 3, v10")
    A("v_lshlrev_b32 v12, 5, v12")
    A("v_lshl_add_u32 v12, v9, 3, v12")
    A("v_lshl_add_u32 v12, v7, 7, v12")
    A(f"ds_write_b64 v12, v[{accB}:{accB+1}] offset:{HP}")
    A("s_waitcnt lgkmcnt(0)")
    A("s_barrier")
    stamp(2)
    A("v_lshlrev_b32 v11, 5, v10")
    regs = [P + 4 * i for i in range(4)] + [Z + 4 * i for i in range(12)]
    for w in range(8):
        A(f"ds_read_b128 v[{regs[2*w]}:{regs[2*w]+3}], v11 offset:{QP + w*512}")
        A(f"ds_read_b128 v[{regs[2*w+1]}:{regs[2*w+1]+3}], v11 offset:{QP + w*512 + 16}")
    A("v_and_b32 v12, 3, v10")
    A("v_lshl_add_u32 v12, v7, 2, v12")
    A("v_lshlrev_b32 v12, 2, v12")
    for w in range(8): A(f"ds_read_b32 v{accA+w}, v12 offset:{HP + w*128}")
    A("s_waitcnt lgkmcnt(0)")
    for w in range(1, 8):
        for half in range(2):
            for e in range(4):
                A(f"v_add_f32 v{regs[half]+e}, v{regs[half]+e}, v{regs[2*w+half]+e}")
    A(f"v_cvt_pk_bf16_f32 v{Q}, v{regs[0]}, v{regs[0]+1}")
    A(f"v_cvt_pk_bf16_f32 v{Q+1}, v{regs[0]+2}, v{regs[0]+3}")
    A(f"v_cvt_pk_bf16_f32 v{Q+2}, v{regs[1]}, v{regs[1]+1}")
    A(f"v_cvt_pk_bf16_f32 v{Q+3}, v{regs[1]+2}, v{regs[1]+3}")
    for w in range(1, 8): A(f"v_add_f32 v{accA}, v{accA}, v{accA+w}")
    bf16r(A, accA, accA)
    A(f"v_mul_f32 v{accA+1}, 0xbfb8aa3b, v{accA}")
    A(f"v_exp_f32 v{accA+1}, v{accA+1}")
    A(f"v_add_f32 v{accA+1}, 1.0, v{accA+1}")
    A(f"v_rcp_f32 v{accA+1}, v{accA+1}")
    A(f"v_mul_f32 v{accA}, v{accA}, v{accA+1}")
    A(f"v_cvt_pk_bf16_f32 v{HL}, v{accA}, v{accA}")
    A(f"v_and_b32 v{HL}, 0xffff, v{HL}")
    A(f"v_lshlrev_b32 v{HH}, 16, v{HL}")
    stamp(3)
    A.c("K phase")
    def kstep(t, reg, p):
        vm.wait(f"k{t}")
        A(f"v_dot2_f32_bf16 v{p}, v{reg}, v{Q}, 0")
        for r in range(1, 4): A(f"v_dot2_f32_bf16 v{p}, v{reg+r}, v{Q+r}, v{p}")
        kvload(f"v{t}", V_, t, reg)
    for t in range(16): kstep(t, TLO + 4 * t, P + t)
    treduce(A, P, None, R0)
    stamp(4)
    for t in range(16, 32): kstep(t, THI + 4 * (t - 16), P + t - 16)
    treduce(A, P, None, R1)
    stamp(5)
    A(f"v_cvt_pk_bf16_f32 v{P}, v{R0}, v{R1}")
    A(f"v_lshlrev_b32 v{R0}, 16, v{P}")
    A(f"v_and_b32 v{R1}, 0xffff0000, v{P}")
    A(f"v_mul_f32 v{R0}, 0x3db504f3, v{R0}")
    A(f"v_mul_f32 v{R1}, 0x3db504f3, v{R1}")
    A(f"v_cvt_pk_bf16_f32 v{P}, v{R0}, v{R1}")
    A(f"v_lshlrev_b32 v{R0}, 16, v{P}")
    A(f"v_and_b32 v{R1}, 0xffff0000, v{P}")
    A(f"v_max_f32 v{P}, v{R0}, v{R1}")
    wave_reduce(A, P, "v_max_f32", 65)
    A(f"v_mov_b32 v{P+1}, s65")
    A(f"v_mov_b32 v{P+2}, s{sW}")
    A(f"v_lshlrev_b32 v15, 2, v{P+2}")
    A(f"ds_write_b32 v15, v{P+1} offset:{MW}")
    zero(A, accB, 8)
    for i in range(4):
        vm.wait(f"w2{i}")
        acc8(A, accB, HL, HH, W + 4 * i, f"row_newbcast:{i}")
    A("v_lshlrev_b32 v11, 5, v1")
    A("v_lshl_add_u32 v13, v7, 11, v11")
    A("s_nop 1")
    A(f"ds_write_b128 v13, v[{accB}:{accB+3}] offset:{YF}")
    A(f"ds_write_b128 v13, v[{accB+4}:{accB+7}] offset:{YF+16}")
    A("s_waitcnt lgkmcnt(0)")
    A("s_barrier")
    stamp(6)
    A("v_mov_b32 v11, 0")
    A(f"ds_read_b128 v[{P}:{P+3}], v11 offset:{MW}")
    A(f"ds_read_b128 v[{P+4}:{P+7}], v11 offset:{MW+16}")
    A("v_lshlrev_b32 v12, 2, v0")
    for w in range(8): A(f"ds_read_b32 v{Z+w}, v12 offset:{YF + w*2048}")
    A("s_waitcnt lgkmcnt(0)")
    A(f"v_max3_f32 v{P}, v{P}, v{P+1}, v{P+2}")
    A(f"v_max3_f32 v{P+3}, v{P+3}, v{P+4}, v{P+5}")
    A(f"v_max3_f32 v{P}, v{P}, v{P+6}, v{P+7}")
    A(f"v_max_f32 v46, v{P}, v{P+3}")
    A(f"v_sub_f32 v{R0}, v{R0}, v46")
    A(f"v_sub_f32 v{R1}, v{R1}, v46")
    A(f"v_mul_f32 v{R0}, 0x3fb8aa3b, v{R0}")
    A(f"v_mul_f32 v{R1}, 0x3fb8aa3b, v{R1}")
    A(f"v_exp_f32 v{R0}, v{R0}")
    A(f"v_exp_f32 v{R1}, v{R1}")
    A(f"v_cvt_pk_bf16_f32 v{P}, v{R0}, v{R1}")
    A(f"v_and_b32 v{PL0}, 0xffff, v{P}")
    A(f"v_lshlrev_b32 v{PH0}, 16, v{P}")
    A(f"v_lshrrev_b32 v{PL1}, 16, v{P}")
    A(f"v_and_b32 v{PH1}, 0xffff0000, v{P}")
    A(f"v_add_f32 v{P+1}, v{R0}, v{R1}")
    wave_reduce(A, P + 1, "v_add_f32", 65)
    A(f"v_mov_b32 v{P+1}, s65")
    A(f"ds_write_b32 v15, v{P+1} offset:{LW}")
    for w in range(1, 8): A(f"v_add_f32 v{Z}, v{Z}, v{Z+w}")
    A(f"s_lshl_b32 s65, s{sB}, 6")
    A(f"s_add_u32 s66, s65, s{sU}")
    A("s_lshl_b32 s66, s66, 11")
    A(f"s_add_u32 s66, s66, {WS_YF}")
    vm.issue("yf", f"buffer_store_dword v{Z}, v12, s[{WS_}:{WS_+3}], s66 offen")
    A(f"s_lshl_b32 s66, s{sH}, 1")
    A(f"s_add_u32 s66, s66, s{sS}")
    A("s_add_u32 s67, s65, s66")
    A.c("V phase")
    zero(A, accA, 8)
    for t in range(16):
        vm.wait(f"v{t}")
        acc8(A, accA, PL0, PH0, TLO + 4 * t, f"row_newbcast:{t}")
        r = TLO + 4 * t
        vm.issue(f"wo{t}", f"buffer_load_dwordx4 v[{r}:{r+3}], v{vWO}, s[{WO_}:{WO_+3}], s{80+t//4} offen offset:{(t%4)*1024} {WLD}")
    stamp(7)
    for t in range(16, 32):
        vm.wait(f"v{t}")
        acc8(A, accA, PL1, PH1, THI + 4 * (t - 16), f"row_newbcast:{t-16}")
    stamp(8)
    A.c("tail")
    greduce(A, accA)
    A(f"ds_write_b64 v14, v[{accA}:{accA+1}] offset:{OP}")
    A("s_waitcnt lgkmcnt(0)")
    A("s_barrier")
    A("v_lshl_add_u32 v11, v7, 4, v10")
    A("v_lshlrev_b32 v11, 2, v11")
    for w in range(8): A(f"ds_read_b32 v{P+w}, v11 offset:{OP + w*512}")
    A("v_mov_b32 v15, 0")
    A(f"ds_read_b128 v[{P+8}:{P+11}], v15 offset:{LW}")
    A(f"ds_read_b128 v[{P+12}:{P+15}], v15 offset:{LW+16}")
    zero(A, accB, 8)
    A("s_waitcnt lgkmcnt(0)")
    for w in range(1, 8): A(f"v_add_f32 v{P}, v{P}, v{P+w}")
    A(f"v_cvt_pk_bf16_f32 v{XL}, v{P}, v{P}")
    A(f"v_and_b32 v{XL}, 0xffff, v{XL}")
    A(f"v_lshlrev_b32 v{XH}, 16, v{XL}")
    for w in range(1, 8): A(f"v_add_f32 v47, v{P+8}, v{P+8+w}" if w == 1 else f"v_add_f32 v47, v47, v{P+8+w}")
    for t in range(16):
        vm.wait(f"wo{t}")
        acc8(A, accB, XL, XH, TLO + 4 * t, f"row_newbcast:{t}")
    A(f"ds_write_b128 v13, v[{accB}:{accB+3}] offset:{YP}")
    A(f"ds_write_b128 v13, v[{accB+4}:{accB+7}] offset:{YP+16}")
    A("s_waitcnt lgkmcnt(0)")
    A("s_barrier")
    for w in range(8): A(f"ds_read_b32 v{Z+w}, v12 offset:{YP + w*2048}")
    A("s_waitcnt lgkmcnt(0)")
    for w in range(1, 8): A(f"v_add_f32 v{Z}, v{Z}, v{Z+w}")
    A("s_lshl_b32 s66, s67, 11")
    vm.issue("ya", f"buffer_store_dword v{Z}, v12, s[{WS_}:{WS_+3}], s66 offen")
    A("v_cmp_eq_u32 vcc, 0, v0")
    A("s_and_saveexec_b64 s[68:69], vcc")
    A("s_cbranch_execz L_main_noml")
    A("s_lshl_b32 s66, s67, 3")
    A(f"s_add_u32 s66, s66, {WS_ML}")
    A("v_mov_b32 v11, 0")
    vm.issue("ml", f"buffer_store_dwordx2 v[46:47], v11, s[{WS_}:{WS_+3}], s66 offen")
    A("L_main_noml:")
    if stamps:
        stamp(9)
        A("s_mov_b64 exec, -1")
        A("s_cmp_eq_u32 s2, 77")
        A("s_cbranch_scc0 L_main_end")
        A(f"s_cmp_eq_u32 s{sW}, 0")
        A("s_cbranch_scc0 L_main_end")
        for i in range(10): A(f"v_writelane_b32 v11, s{STAMP_REGS[i]}, {i}")
        A("v_lshlrev_b32 v12, 2, v1")
        A("v_cmp_gt_u32 vcc, 10, v1")
        A("s_and_saveexec_b64 s[68:69], vcc")
        A("global_store_dword v12, v11, s[22:23]")
    A("L_main_end:")
    A("s_endpgm")
    return A

def gen_fin():
    A = Asm(); vm = VM(A)
    A("s_cmp_ge_u32 s2, 64")
    A("s_cbranch_scc1 L_fin_end")
    A("s_load_dwordx2 s[4:5], s[0:1], 0")
    A("s_load_dwordx2 s[6:7], s[0:1], 64")
    A("s_load_dwordx2 s[8:9], s[0:1], 80")
    A("v_lshrrev_b32 v2, 6, v0")
    A("v_readfirstlane_b32 s10, v2")
    A("v_and_b32 v1, 63, v0")
    A("s_lshl_b32 s11, s2, 2")
    A("s_add_u32 s10, s10, s11")
    A("s_lshr_b32 s11, s10, 6")
    A("s_and_b32 s12, s10, 63")
    A("s_waitcnt lgkmcnt(0)")
    srd(A, 16, 8, None, 0x200000)
    srd(A, 20, 4, None, 4096)
    srd(A, 24, 6, None, 4096)
    A("s_lshl_b32 s13, s11, 17")
    A("s_lshl_b32 s14, s12, 5")
    A("s_add_u32 s13, s13, s14")
    A("v_lshlrev_b32 v3, 11, v1")
    vm.issue("a0", "buffer_load_dwordx4 v[8:11], v3, s[16:19], s13 offen")
    vm.issue("a1", "buffer_load_dwordx4 v[12:15], v3, s[16:19], s13 offen offset:16")
    A(f"s_add_u32 s14, s13, {WS_YF}")
    vm.issue("f0", "buffer_load_dwordx4 v[16:19], v3, s[16:19], s14 offen")
    vm.issue("f1", "buffer_load_dwordx4 v[20:23], v3, s[16:19], s14 offen offset:16")
    A("s_lshl_b32 s14, s11, 9")
    A(f"s_add_u32 s14, s14, {WS_ML}")
    A("v_lshlrev_b32 v4, 3, v1")
    vm.issue("ml", "buffer_load_dwordx2 v[24:25], v4, s[16:19], s14 offen")
    A("v_lshrrev_b32 v5, 4, v1")
    A("v_lshlrev_b32 v5, 2, v5")
    A("s_lshl_b32 s14, s11, 10")
    A("s_lshl_b32 s15, s12, 4")
    A("s_add_u32 s14, s14, s15")
    vm.issue("x", "buffer_load_dword v26, v5, s[20:23], s14 offen")
    vm.wait("ml")
    A(f"v_mov_b32_dpp v27, v24 quad_perm:[1,0,3,2] {DPPM}")
    A("v_max_f32 v27, v27, v24")
    A("v_sub_f32 v27, v24, v27")
    A("v_mul_f32 v27, 0x3fb8aa3b, v27")
    A("v_exp_f32 v27, v27")
    A("v_mul_f32 v28, v25, v27")
    A(f"v_add_f32_dpp v28, v28, v28 quad_perm:[1,0,3,2] {DPPM}")
    A("v_rcp_f32 v28, v28")
    A("v_mul_f32 v27, v27, v28")
    vm.wait("a1")
    for e in range(8): A(f"v_mul_f32 v{8+e}, v{8+e}, v27")
    vm.wait("f1")
    greduce(A, 8)
    greduce(A, 16)
    for d in ("row_ror:8", "row_ror:4", "row_ror:2", "row_ror:1"):
        for r in (8, 9, 16, 17): A(f"v_add_f32_dpp v{r}, v{r}, v{r} {d} {DPPM}")
    vm.wait("x")
    A("v_lshlrev_b32 v28, 16, v26")
    A("v_and_b32 v29, 0xffff0000, v26")
    A("v_cvt_pk_bf16_f32 v30, v8, v9")
    A("v_cvt_pk_bf16_f32 v31, v16, v17")
    A("v_lshlrev_b32 v8, 16, v30")
    A("v_and_b32 v9, 0xffff0000, v30")
    A("v_add_f32 v8, v8, v28")
    A("v_add_f32 v9, v9, v29")
    A("v_cvt_pk_bf16_f32 v30, v8, v9")
    A("v_lshlrev_b32 v8, 16, v30")
    A("v_and_b32 v9, 0xffff0000, v30")
    A("v_lshlrev_b32 v16, 16, v31")
    A("v_and_b32 v17, 0xffff0000, v31")
    A("v_add_f32 v8, v8, v16")
    A("v_add_f32 v9, v9, v17")
    A("v_cvt_pk_bf16_f32 v30, v8, v9")
    A("v_and_b32 v6, 15, v1")
    A("v_cmp_eq_u32 vcc, 0, v6")
    A("s_and_saveexec_b64 s[28:29], vcc")
    A("s_cbranch_execz L_fin_end")
    A("buffer_store_dword v30, v5, s[24:27], s14 offen")
    A("L_fin_end:")
    A("s_endpgm")
    return A

def kd(name, nv, ns=96):
    return f""".amdhsa_kernel {name}
  .amdhsa_next_free_vgpr {nv}
  .amdhsa_next_free_sgpr {ns}
  .amdhsa_accum_offset {min(256,(nv+3)//4*4)}
  .amdhsa_group_segment_fixed_size 0
  .amdhsa_kernarg_size 88
  .amdhsa_user_sgpr_count 2
  .amdhsa_user_sgpr_kernarg_segment_ptr 1
  .amdhsa_system_sgpr_workgroup_id_x 1
  .amdhsa_float_denorm_mode_32 3
.end_amdhsa_kernel
"""

def build(**kw):
    m = gen_main(**kw); f = gen_fin()
    s = HEADER
    s += f"; @launch kernel={NAME}_kernel grid=(256,1,1) block=(512,1,1) lds={LDS_TOTAL}\n"
    s += f"; @launch kernel=fin_kernel grid=(64,1,1) block=(256,1,1) lds=0\n"
    s += '.amdgcn_target "amdgcn-amd-amdhsa--gfx950"\n.text\n'
    for nm, a in ((NAME + "_kernel", m), ("fin_kernel", f)):
        s += f".globl {nm}\n.p2align 8\n.type {nm},@function\n{nm}:\n" + a.text()
    s += '.section .rodata,"a"\n.p2align 6\n'
    s += kd(NAME + "_kernel", 256, 102)
    s += ".p2align 6\n" + kd("fin_kernel", 32, 32)
    return s

if __name__ == "__main__":
    out = sys.argv[1] if len(sys.argv) > 1 else f"cdna_kernels/{NAME}.s"
    stamps = "stamps" in sys.argv
    open(out, "w").write(build(stamps=stamps))
    print("written", out)
```

```python
import sys
from asmlib import Asm
from gen1 import (NAME, HEADER, VM, DPPM, acc8, zero, greduce, wave_reduce, treduce, bf16r, srd, kd, gen_fin,
                  WS_YA, WS_YF, WS_ML)
STAMP_NAMES = []

XN = 0
QP = 1024
HP = QP + 4096
ML = HP + 1024
OP = ML + 64
YP = OP + 4096
YF = YP + 16384
LDS_TOTAL = YF + 16384

def gen_main(LD="nt", WLD="nt", stamps=False, W=8, NPRE=8, prio=0):
    A = Asm(); vm = VM(A)
    accA, accB, Q, XL, XH, HL, HH = 16, 24, 32, 36, 37, 38, 39
    R0, R1, PL0, PH0, PL1, PH1 = 40, 41, 42, 43, 44, 45
    P, Wr, TLO, THI, Z = 48, 64, 80, 144, 208
    vKV, vWQ, vW1, vW2, vWO = 2, 3, 4, 5, 6
    K_, V_, WQ_, W1_, W2_, WO_, X_, WS_ = 28, 32, 36, 40, 44, 48, 52, 56
    sB, sH, sS, sU, sW = 60, 61, 62, 63, 64
    stn = [0]
    def stamp(label=""):
        if not stamps: return
        A("s_memrealtime s[90:91]")
        A("s_waitcnt lgkmcnt(0)")
        A(f"v_writelane_b32 v255, s90, {stn[0]}")
        STAMP_NAMES.append(label); stn[0] += 1
    A("s_cmp_ge_u32 s2, 256")
    A("s_cbranch_scc1 L_main_end")
    stamp("entry")
    A("s_load_dwordx16 s[4:19], s[0:1], 0")
    A("s_load_dwordx4 s[20:23], s[0:1], 64")
    A("s_load_dwordx2 s[24:25], s[0:1], 80")
    A("s_and_b32 s65, s2, 7")
    A("s_lshr_b32 s66, s2, 3")
    A("s_lshr_b32 s67, s66, 3")
    A("s_lshl_b32 s68, s65, 2")
    A(f"s_add_u32 s{sH}, s67, s68")
    A("s_and_b32 s68, s66, 7")
    A(f"s_lshr_b32 s{sB}, s68, 1")
    A(f"s_and_b32 s{sS}, s66, 1")
    A("s_lshl_b32 s67, s67, 1")
    A(f"s_add_u32 s67, s67, s{sS}")
    A("s_lshl_b32 s67, s67, 3")
    A(f"s_add_u32 s{sU}, s67, s65")
    A(f"s_lshl_b32 s65, s{sB}, 5")
    A(f"s_add_u32 s65, s65, s{sH}")
    A("s_lshl_b32 s65, s65, 21")
    A(f"s_lshl_b32 s66, s{sS}, 18")
    A("s_add_u32 s65, s65, s66")
    A(f"s_add_u32 s26, s65, {6144*256}")
    for i in range(8): A(f"s_mov_b32 s{80+i}, {i*4096}")
    A("v_and_b32 v1, 63, v0")
    A("v_lshrrev_b32 v7, 6, v0")
    A("v_lshlrev_b32 v8, 4, v1")
    A(f"v_readfirstlane_b32 s{sW}, v7")
    A(f"v_lshl_add_u32 v{vKV}, v7, 15, v8")
    A("v_lshrrev_b32 v9, 4, v1")
    A("v_and_b32 v10, 15, v1")
    A("v_lshl_add_u32 v11, v7, 6, v9")
    A("v_lshlrev_b32 v11, 13, v11")
    A(f"v_lshl_add_u32 v{vWQ}, v10, 4, v11")
    A("s_waitcnt lgkmcnt(0)")
    stamp("kernarg")
    srd(A, K_, 6, 26, 262144)
    A(f"s_lshl_b32 s65, s{sB}, 10")
    srd(A, X_, 4, 65, 1024)
    A(f"s_lshl_b32 s65, s{sH}, 8")
    A(f"s_sub_u32 s66, {512*8192}, s65")
    srd(A, WQ_, 10, 65, "s66")
    A("s_mov_b32 s68, 0")

    def ld(name, reg, vaddr, srd_, soff, off, fl):
        o = f" offset:{off}" if off else ""
        vm.issue(name, f"buffer_load_dwordx4 v[{reg}:{reg+3}], v{vaddr}, s[{srd_}:{srd_+3}], {soff} offen{o} {fl}")
    def kv(kind, t):
        reg = (TLO + 4 * t) if t < 16 else (THI + 4 * (t - 16))
        ld(f"{kind}{t}", reg, vKV, K_ if kind == "k" else V_, f"s{80+t//4}", (t % 4) * 1024, LD)
    def wq(t):
        ld(f"wq{t}", THI + 4 * t, vWQ, WQ_, "s68", 0, WLD)
        if t < 15: A("s_add_u32 s68, s68, 32768")
    def w1(i):
        ld(f"w1{i}", Wr + 4 * i, vW1, W1_, "s69", 0, WLD)
        if i < 3: A(f"s_add_u32 s69, s69, {16*2752}")
    def w2(i): ld(f"w2{i}", Wr + 4 * i, vW2, W2_, "0", i * 1024, WLD)
    def wo(t): ld(f"wo{t}", TLO + 4 * t, vWO, WO_, f"s{80+t//4}", (t % 4) * 1024, WLD)

    consumers = {}
    pending = []
    ready = set()
    def landed(): return [n for n in pending if n not in vm.q]
    def run_consumers():
        for n in list(pending):
            if n in vm.q: continue
            c = consumers.get(n)
            if c is None:
                pending.remove(n); continue
            cond, fn = c
            if cond is None or cond in ready:
                fn(); pending.remove(n)
    def issue(fn, name, w=None):
        w = W if w is None else w
        if vm.outstanding() >= w:
            tgt = vm.q[vm.outstanding() - w]
            vm.wait(tgt)
            run_consumers()
        fn(); pending.append(name)
    def drain_to(name):
        vm.wait(name); run_consumers()

    for t in range(16):
        consumers[f"wq{t}"] = ("ln", (lambda t=t: acc8(A, accA, XL, XH, THI + 4 * t, f"row_newbcast:{t}")))
    for i in range(4):
        consumers[f"w1{i}"] = ("ln", (lambda i=i: acc8(A, accB, HL, HH, Wr + 4 * i, f"quad_perm:[{i},{i},{i},{i}]")))
    def kcons(t):
        reg = (TLO + 4 * t) if t < 16 else (THI + 4 * (t - 16)); p = P + (t % 16)
        A(f"v_dot2_f32_bf16 v{p}, v{reg}, v{Q}, 0")
        for r in range(1, 4): A(f"v_dot2_f32_bf16 v{p}, v{reg+r}, v{Q+r}, v{p}")
    for t in range(32): consumers[f"k{t}"] = ("q" if t < 16 else "q2", (lambda t=t: kcons(t)))
    for t in range(32):
        reg = (TLO + 4 * t) if t < 16 else (THI + 4 * (t - 16))
        consumers[f"v{t}"] = ("p", (lambda t=t, reg=reg: acc8(A, accA, PL0 if t < 16 else PL1, PH0 if t < 16 else PH1, reg, f"row_newbcast:{t%16}")))

    if prio: A(f"s_setprio {prio}")
    vm.issue("x", f"buffer_load_dwordx4 v[{P}:{P+3}], v8, s[{X_}:{X_+3}], 0 offen"); pending.append("x")
    first = []
    for t in range(16): first += [("k", t), ("wq", t)]
    def iss(item, w=None):
        kind, t = item
        fn = {"k": lambda: kv("k", t), "v": lambda: kv("v", t), "wq": lambda: wq(t), "w1": lambda: w1(t), "w2": lambda: w2(t), "wo": lambda: wo(t)}[kind]
        issue(fn, f"{kind}{t}", w)
    n0 = W - 1
    for it in first[:n0]: iss(it, 99)
    A("v_and_b32 v11, 1, v1")
    A("v_cmp_ne_u32 s[70:71], 0, v11")
    A("v_and_b32 v11, 2, v1")
    A("v_cmp_ne_u32 s[72:73], 0, v11")
    A("v_lshrrev_b32 v11, 2, v1")
    A("v_lshl_add_u32 v11, v7, 6, v11")
    A("v_mul_u32_u24 v11, 2752, v11")
    A("v_and_b32 v12, 3, v1")
    A(f"v_lshl_add_u32 v{vW1}, v12, 4, v11")
    A(f"v_lshl_add_u32 v{vW2}, v7, 12, v8")
    A(f"v_lshl_add_u32 v{vWO}, v7, 14, v8")
    A(f"s_lshl_b32 s65, s{sU}, 6")
    A(f"s_sub_u32 s66, {512*2752}, s65")
    A(f"s_cmp_lt_u32 s{sU}, 43")
    A("s_cselect_b32 s66, s66, 0")
    A("s_cselect_b32 s65, s65, 0")
    srd(A, W1_, 16, 65, "s66")
    A("s_mov_b32 s69, 0")
    srd(A, V_, 8, 26, 262144)
    A(f"s_lshl_b32 s65, s{sU}, 15")
    A(f"s_cmp_lt_u32 s{sU}, 43")
    A("s_cselect_b32 s66, 32768, 0")
    A("s_cselect_b32 s65, s65, 0")
    srd(A, W2_, 18, 65, "s66")
    A(f"s_lshl_b32 s65, s{sH}, 17")
    srd(A, WO_, 12, 65, 131072)
    srd(A, WS_, 24, None, 0x200000)
    stamp("issued0")
    A.c("layernorm")
    vm.wait("x"); pending.remove("x")
    F = P + 4; t0 = P + 12; zt = Z
    for i in range(4):
        A(f"v_lshlrev_b32 v{F+2*i}, 16, v{P+i}")
        A(f"v_and_b32 v{F+2*i+1}, 0xffff0000, v{P+i}")
    A(f"v_add_f32 v{t0}, v{F}, v{F+1}")
    for i in range(2, 8): A(f"v_add_f32 v{t0}, v{t0}, v{F+i}")
    wave_reduce(A, t0, "v_add_f32", 65)
    A(f"v_mov_b32 v{t0+1}, s65")
    A(f"v_mul_f32 v{t0+1}, 0x3b000000, v{t0+1}")
    A(f"v_sub_f32 v{t0+2}, v{F}, v{t0+1}")
    A(f"v_mul_f32 v{t0}, v{t0+2}, v{t0+2}")
    for i in range(1, 8):
        A(f"v_sub_f32 v{t0+2}, v{F+i}, v{t0+1}")
        A(f"v_fmac_f32 v{t0}, v{t0+2}, v{t0+2}")
    wave_reduce(A, t0, "v_add_f32", 65)
    A(f"v_mov_b32 v{t0+2}, s65")
    A(f"v_mul_f32 v{t0+2}, 0x3b000000, v{t0+2}")
    bf16r(A, t0 + 1, t0 + 1)
    bf16r(A, t0 + 2, t0 + 2)
    A(f"v_add_f32 v{t0+2}, 0x3727c5ac, v{t0+2}")
    bf16r(A, t0 + 2, t0 + 2)
    A(f"v_sqrt_f32 v{t0+2}, v{t0+2}")
    bf16r(A, t0 + 2, t0 + 2)
    A(f"v_rcp_f32 v{t0+3}, v{t0+2}")
    for i in range(8): A(f"v_sub_f32 v{F+i}, v{F+i}, v{t0+1}")
    for i in range(0, 8, 2): A(f"v_cvt_pk_bf16_f32 v{P+i//2}, v{F+i}, v{F+i+1}")
    for i in range(4):
        A(f"v_lshlrev_b32 v{F+2*i}, 16, v{P+i}")
        A(f"v_and_b32 v{F+2*i+1}, 0xffff0000, v{P+i}")
    for i in range(8): A(f"v_mul_f32 v{zt+i}, v{F+i}, v{t0+3}")
    for i in range(8): A(f"v_fma_f32 v{F+i}, -v{zt+i}, v{t0+2}, v{F+i}")
    for i in range(8): A(f"v_fmac_f32 v{zt+i}, v{F+i}, v{t0+3}")
    for i in range(0, 8, 2): A(f"v_cvt_pk_bf16_f32 v{P+i//2}, v{zt+i}, v{zt+i+1}")
    A(f"ds_write_b128 v8, v[{P}:{P+3}] offset:{XN}")
    A("v_lshlrev_b32 v11, 2, v10")
    A("v_add_u32 v11, v11, v9")
    A("v_lshl_add_u32 v11, v7, 6, v11")
    A("v_lshlrev_b32 v11, 1, v11")
    A("v_and_b32 v12, 3, v1")
    A("v_lshlrev_b32 v12, 4, v12")
    A("v_lshrrev_b32 v13, 2, v1")
    A("v_add_u32 v12, v12, v13")
    A("v_lshl_add_u32 v12, v7, 6, v12")
    A("v_lshlrev_b32 v12, 1, v12")
    A("s_waitcnt lgkmcnt(0)")
    A(f"ds_read_u16 v{XL}, v11 offset:{XN}")
    A(f"ds_read_u16 v{HL}, v12 offset:{XN}")
    zero(A, accA, 8); zero(A, accB, 8)
    A("s_waitcnt lgkmcnt(0)")
    A(f"v_lshlrev_b32 v{XH}, 16, v{XL}")
    A(f"v_lshlrev_b32 v{HH}, 16, v{HL}")
    ready.add("ln")
    stamp("ln_done")
    for it in first[n0:]: iss(it)
    for i in range(4): iss(("w1", i))
    npre = 0
    def k_hi(t, w=None):
        nm = f"wq{t-16}"
        if nm in pending:
            vm.wait(nm); run_consumers()
        iss(("k", t), w)
    for t in range(16, 16 + min(NPRE, 4)): k_hi(t)
    drain_to("w13")
    assert not any(n.startswith(("wq", "w1")) for n in pending), pending
    stamp("p1_done")
    for t in range(16 + min(NPRE, 4), 16 + NPRE): k_hi(t, 99)
    if prio: A("s_setprio 0")
    greduce(A, accA)
    greduce(A, accB)
    for e in range(2): A(f"v_add_f32_dpp v{accB+e}, v{accB+e}, v{accB+e} row_ror:4 {DPPM}")
    for e in range(2): A(f"v_add_f32_dpp v{accB+e}, v{accB+e}, v{accB+e} row_ror:8 {DPPM}")
    A("v_lshlrev_b32 v11, 5, v10")
    A("v_lshl_add_u32 v11, v9, 3, v11")
    A("v_lshl_add_u32 v14, v7, 9, v11")
    A(f"ds_write_b64 v14, v[{accA}:{accA+1}] offset:{QP}")
    A("v_and_b32 v12, 3, v10")
    A("v_lshlrev_b32 v12, 5, v12")
    A("v_lshl_add_u32 v12, v9, 3, v12")
    A("v_lshl_add_u32 v12, v7, 7, v12")
    A(f"ds_write_b64 v12, v[{accB}:{accB+1}] offset:{HP}")
    A("s_waitcnt lgkmcnt(0)")
    A("s_barrier")
    stamp("b1")
    A("v_lshlrev_b32 v11, 5, v10")
    regs = [P + 4 * i for i in range(4)] + [Z + 4 * i for i in range(10)] + [accB, accB + 4]
    for w in range(8):
        A(f"ds_read_b128 v[{regs[2*w]}:{regs[2*w]+3}], v11 offset:{QP + w*512}")
        A(f"ds_read_b128 v[{regs[2*w+1]}:{regs[2*w+1]+3}], v11 offset:{QP + w*512 + 16}")
    A("v_and_b32 v12, 3, v10")
    A("v_lshl_add_u32 v12, v7, 2, v12")
    A("v_lshlrev_b32 v12, 2, v12")
    for w in range(8): A(f"ds_read_b32 v{accA+w}, v12 offset:{HP + w*128}")
    A("s_waitcnt lgkmcnt(0)")
    for w in range(1, 8):
        for half in range(2):
            for e in range(4):
                A(f"v_add_f32 v{regs[half]+e}, v{regs[half]+e}, v{regs[2*w+half]+e}")
    A(f"v_cvt_pk_bf16_f32 v{Q}, v{regs[0]}, v{regs[0]+1}")
    A(f"v_cvt_pk_bf16_f32 v{Q+1}, v{regs[0]+2}, v{regs[0]+3}")
    A(f"v_cvt_pk_bf16_f32 v{Q+2}, v{regs[1]}, v{regs[1]+1}")
    A(f"v_cvt_pk_bf16_f32 v{Q+3}, v{regs[1]+2}, v{regs[1]+3}")
    for w in range(1, 8): A(f"v_add_f32 v{accA}, v{accA}, v{accA+w}")
    bf16r(A, accA, accA)
    A(f"v_mul_f32 v{accA+1}, 0xbfb8aa3b, v{accA}")
    A(f"v_exp_f32 v{accA+1}, v{accA+1}")
    A(f"v_add_f32 v{accA+1}, 1.0, v{accA+1}")
    A(f"v_rcp_f32 v{accA+1}, v{accA+1}")
    A(f"v_mul_f32 v{accA}, v{accA}, v{accA+1}")
    A(f"v_cvt_pk_bf16_f32 v{HL}, v{accA}, v{accA}")
    A(f"v_and_b32 v{HL}, 0xffff, v{HL}")
    A(f"v_lshlrev_b32 v{HH}, 16, v{HL}")
    stamp("q_ready")
    A.c("K phase")
    ready.add("q")
    run_consumers()
    assert not any(n in pending for n in [f"k{t}" for t in range(16)])
    treduce(A, P, None, R0)
    ready.add("q2")
    stamp("k_half")
    rest = [("k", t) for t in range(16 + NPRE, 32)] + [("w2", i) for i in range(4)] + [("v", t) for t in range(16)]
    idx = 0
    while any(f"k{t}" in pending or f"k{t}" not in done_names(pending, vm, t) for t in []): pass
    def k_all_consumed(): return not any(n.startswith("k") for n in pending) and all(("k", t) not in rest[idx:] for t in range(32))
    while not k_all_consumed():
        if idx < len(rest):
            run_consumers()
            iss(rest[idx]); idx += 1
        else:
            nxt = [n for n in pending if n.startswith("k")][0]
            drain_to(nxt)
    treduce(A, P, None, R1)
    stamp("k_done")
    A(f"v_cvt_pk_bf16_f32 v{P}, v{R0}, v{R1}")
    A(f"v_lshlrev_b32 v{R0}, 16, v{P}")
    A(f"v_and_b32 v{R1}, 0xffff0000, v{P}")
    A(f"v_mul_f32 v{R0}, 0x3db504f3, v{R0}")
    A(f"v_mul_f32 v{R1}, 0x3db504f3, v{R1}")
    A(f"v_cvt_pk_bf16_f32 v{P}, v{R0}, v{R1}")
    A(f"v_lshlrev_b32 v{R0}, 16, v{P}")
    A(f"v_and_b32 v{R1}, 0xffff0000, v{P}")
    A(f"v_max_f32 v{P}, v{R0}, v{R1}")
    wave_reduce(A, P, "v_max_f32", 65)
    A(f"v_subrev_f32 v{R0}, s65, v{R0}")
    A(f"v_subrev_f32 v{R1}, s65, v{R1}")
    A(f"v_mul_f32 v{R0}, 0x3fb8aa3b, v{R0}")
    A(f"v_mul_f32 v{R1}, 0x3fb8aa3b, v{R1}")
    A(f"v_exp_f32 v{R0}, v{R0}")
    A(f"v_exp_f32 v{R1}, v{R1}")
    A(f"v_cvt_pk_bf16_f32 v{P}, v{R0}, v{R1}")
    A(f"v_and_b32 v{PL0}, 0xffff, v{P}")
    A(f"v_lshlrev_b32 v{PH0}, 16, v{P}")
    A(f"v_lshrrev_b32 v{PL1}, 16, v{P}")
    A(f"v_and_b32 v{PH1}, 0xffff0000, v{P}")
    A(f"v_add_f32 v{P+1}, v{R0}, v{R1}")
    wave_reduce(A, P + 1, "v_add_f32", 66)
    A(f"v_mov_b32 v{P+2}, s65")
    A(f"v_mov_b32 v{P+3}, s66")
    A(f"v_lshlrev_b32 v15, 3, v7")
    A(f"ds_write_b64 v15, v[{P+2}:{P+3}] offset:{ML}")
    zero(A, accA, 8)
    ready.add("p")
    stamp("p_done")
    A("v_lshlrev_b32 v11, 5, v1")
    A("v_lshl_add_u32 v13, v7, 11, v11")
    def w2cons(i):
        if i == 0: zero(A, accB, 8)
        acc8(A, accB, HL, HH, Wr + 4 * i, f"row_newbcast:{i}")
        if i == 3:
            A(f"ds_write_b128 v13, v[{accB}:{accB+3}] offset:{YF}")
            A(f"ds_write_b128 v13, v[{accB+4}:{accB+7}] offset:{YF+16}")
    for i in range(4): consumers[f"w2{i}"] = ("p", (lambda i=i: w2cons(i)))
    for i in range(4):
        nm = f"w2{i}"
        issued = (("w2", i) not in rest[idx:])
        if issued and nm not in pending: pending.insert(0, nm)
    w2p = sorted([n for n in pending if n.startswith("w2")]); oth = [n for n in pending if not n.startswith("w2")]
    pending[:] = w2p + oth
    run_consumers()
    A.c("V phase")
    tail_seq = rest[idx:]
    for t in range(16): tail_seq += [("v", 16 + t), ("wo", t)]
    for it in tail_seq:
        kind, t = it
        if kind == "wo":
            nm = f"v{t}"
            if nm in pending:
                vm.wait(nm); run_consumers()
        run_consumers()
        iss(it)
    stamp("all_issued")
    while any(n.startswith(("v", "w2")) for n in pending):
        nxt = [n for n in pending if n.startswith(("v", "w2"))][0]
        drain_to(nxt)
    stamp("v_done")
    A.c("tail")
    greduce(A, accA)
    A(f"ds_write_b64 v14, v[{accA}:{accA+1}] offset:{OP}")
    A("v_lshl_add_u32 v11, v7, 4, v10")
    A("v_lshlrev_b32 v11, 2, v11")
    A("v_and_b32 v15, 7, v1")
    A("v_lshlrev_b32 v15, 3, v15")
    A("v_lshlrev_b32 v12, 2, v0")
    zero(A, accB, 8)
    A("s_waitcnt lgkmcnt(0)")
    A("s_barrier")
    stamp("b3")
    A(f"ds_read_b64 v[{P+8}:{P+9}], v15 offset:{ML}")
    for w in range(8): A(f"ds_read_b32 v{P+w}, v11 offset:{OP + w*512}")
    A("s_waitcnt lgkmcnt(8)")
    A(f"v_mov_b32 v46, v{P+8}")
    for d in ("quad_perm:[1,0,3,2]", "quad_perm:[2,3,0,1]", "row_half_mirror"):
        A(f"v_max_f32_dpp v46, v46, v46 {d} {DPPM}")
    A(f"v_sub_f32 v{P+8}, v{P+8}, v46")
    A(f"v_mul_f32 v{P+8}, 0x3fb8aa3b, v{P+8}")
    A(f"v_exp_f32 v{P+8}, v{P+8}")
    A(f"v_mul_f32 v47, v{P+9}, v{P+8}")
    A("s_waitcnt lgkmcnt(0)")
    A(f"v_mul_f32_dpp v{P+10}, v{P+8}, v{P} row_newbcast:0 {DPPM}")
    for w in range(1, 8): A(f"v_fmac_f32_dpp v{P+10}, v{P+8}, v{P+w} row_newbcast:{w} {DPPM}")
    for d in ("quad_perm:[1,0,3,2]", "quad_perm:[2,3,0,1]", "row_half_mirror"):
        A(f"v_add_f32_dpp v47, v47, v47 {d} {DPPM}")
    A(f"v_cvt_pk_bf16_f32 v{XL}, v{P+10}, v{P+10}")
    A(f"v_and_b32 v{XL}, 0xffff, v{XL}")
    A(f"v_lshlrev_b32 v{XH}, 16, v{XL}")
    for t in range(16):
        vm.wait(f"wo{t}")
        acc8(A, accB, XL, XH, TLO + 4 * t, f"row_newbcast:{t}")
    A(f"ds_write_b128 v13, v[{accB}:{accB+3}] offset:{YP}")
    A(f"ds_write_b128 v13, v[{accB+4}:{accB+7}] offset:{YP+16}")
    A("s_waitcnt lgkmcnt(0)")
    A("s_barrier")
    stamp("b4")
    for w in range(8): A(f"ds_read_b32 v{Z+w}, v12 offset:{YP + w*2048}")
    for w in range(8): A(f"ds_read_b32 v{Z+8+w}, v12 offset:{YF + w*2048}")
    A(f"s_lshl_b32 s65, s{sB}, 6")
    A(f"s_add_u32 s66, s65, s{sU}")
    A("s_lshl_b32 s66, s66, 11")
    A(f"s_add_u32 s66, s66, {WS_YF}")
    A(f"s_lshl_b32 s67, s{sH}, 1")
    A(f"s_add_u32 s67, s67, s{sS}")
    A("s_add_u32 s67, s65, s67")
    A("s_lshl_b32 s68, s67, 11")
    A("s_waitcnt lgkmcnt(8)")
    for w in range(1, 8): A(f"v_add_f32 v{Z}, v{Z}, v{Z+w}")
    vm.issue("ya", f"buffer_store_dword v{Z}, v12, s[{WS_}:{WS_+3}], s68 offen")
    A("s_waitcnt lgkmcnt(0)")
    for w in range(1, 8): A(f"v_add_f32 v{Z+8}, v{Z+8}, v{Z+8+w}")
    vm.issue("yf", f"buffer_store_dword v{Z+8}, v12, s[{WS_}:{WS_+3}], s66 offen")
    A("v_cmp_eq_u32 vcc, 0, v0")
    A("s_and_saveexec_b64 s[74:75], vcc")
    A("s_cbranch_execz L_main_noml")
    A("s_lshl_b32 s66, s67, 3")
    A(f"s_add_u32 s66, s66, {WS_ML}")
    A("v_mov_b32 v11, 0")
    vm.issue("ml", f"buffer_store_dwordx2 v[46:47], v11, s[{WS_}:{WS_+3}], s66 offen")
    A("L_main_noml:")
    if stamps:
        A("s_mov_b64 exec, -1")
        stamp("end")
        A(f"s_and_b32 s68, s{sW}, 3")
        A("s_cmp_eq_u32 s68, 0")
        A("s_cbranch_scc0 L_main_end")
        A(f"s_lshr_b32 s68, s{sW}, 2")
        A("s_lshl_b32 s68, s68, 16")
        A("s_lshl_b32 s69, s2, 8")
        A("s_add_u32 s68, s68, s69")
        A("s_add_u32 s68, s68, 0x180000")
        A("v_lshlrev_b32 v12, 2, v1")
        A(f"buffer_store_dword v255, v12, s[{WS_}:{WS_+3}], s68 offen")
    A("L_main_end:")
    A("s_endpgm")
    return A

def done_names(*a): return []

def build(**kw):
    m = gen_main(**kw); f = gen_fin()
    s = HEADER
    s += f"; @launch kernel={NAME}_kernel grid=(256,1,1) block=(512,1,1) lds={LDS_TOTAL}\n"
    s += f"; @launch kernel=fin_kernel grid=(64,1,1) block=(256,1,1) lds=0\n"
    s += '.amdgcn_target "amdgcn-amd-amdhsa--gfx950"\n.text\n'
    for nm, a in ((NAME + "_kernel", m), ("fin_kernel", f)):
        s += f".globl {nm}\n.p2align 8\n.type {nm},@function\n{nm}:\n" + a.text()
    s += '.section .rodata,"a"\n.p2align 6\n'
    s += kd(NAME + "_kernel", 256, 102)
    s += ".p2align 6\n" + kd("fin_kernel", 32, 32)
    return s

if __name__ == "__main__":
    out = sys.argv[1] if len(sys.argv) > 1 else f"cdna_kernels/{NAME}.s"
    kw = {}
    for a in sys.argv[2:]:
        if "=" in a:
            k, v = a.split("=", 1)
            kw[k] = int(v) if v.lstrip("-").isdigit() else v
    if "stamps" in sys.argv: kw["stamps"] = True
    open(out, "w").write(build(**kw))
    if STAMP_NAMES: open(out + ".stamps", "w").write(",".join(STAMP_NAMES))
    print("written", out)
```

```python
import sys
from asmlib import Asm
from gen1 import (NAME, HEADER, VM, DPPM, acc8, zero, greduce, wave_reduce, treduce, bf16r, srd, kd)
STAMP_NAMES = []

XN = 0
QP = 4096
HP = QP + 4096
ML = HP + 1024
CNT = ML + 128
OP = CNT + 128
YP = OP + 4096
LDS_TOTAL = YP + 16384

WS_Y = 0
WS_ML = 0x80000
WS_Q = 0x90000
SPIN_CAP = 200000

def gen_main(LD="nt", WLD="nt", stamps=False, W=8, N0=6, N1=6, N2=0, N3=4, W1AT=16, GQ=18, GQW=6, prio=0, nocons=0, sleep=0, WV=None, FC=24, PUBFIRST=1, STF="sc0 sc1", nopub=0, nobar=0, skipwo=0, skipffn=0, wosc=0):
    A = Asm(); vm = VM(A)
    accA, accB, Q, XL, XH, HL, HH = 16, 24, 32, 36, 37, 38, 39
    R0, R1, PL0, PH0, PL1, PH1 = 40, 41, 42, 43, 44, 45
    vX, vEp = 46, 47
    P, Wr, TLO, THI, Z = 48, 64, 80, 144, 208
    accQ, WQD, GQD = Z, Z + 32, Z
    vKV, vWQ, vW1, vW2, vWO = 2, 3, 4, 5, 6
    K_, V_, WQ_, W1_, W2_, WO_, X_, WS_ = 28, 32, 36, 40, 44, 48, 52, 56
    sB, sH, sS, sU, sW, sE = 60, 61, 62, 63, 64, 27
    sP = 86
    sR = 3
    SEL_INS, SEL_G0, SEL_G1 = 92, 96, 97
    STREGS = [74, 76, 78, 88, 98, 100, 14, 4, 6, 8, 10, 12, 16, 18]
    def stamp(label=""):
        if not stamps: return
        r = STREGS[len(STAMP_NAMES)]
        A(f"s_memrealtime s[{r}:{r+1}]")
        STAMP_NAMES.append(label)
    def dbgcount(idx, sreg):
        if not stamps: return
        A(f"v_writelane_b32 v254, s{sreg}, {idx}")
    def lg(n): A(f"s_waitcnt lgkmcnt({0 if stamps else n})")
    WV = W if WV is None else WV
    A("s_cmp_ge_u32 s2, 256")
    A("s_cbranch_scc1 L_main_end")
    stamp("entry")
    if stamps: A("v_mov_b32 v254, 0")
    A("s_load_dwordx16 s[4:19], s[0:1], 0")
    A("s_load_dwordx4 s[20:23], s[0:1], 64")
    A("s_load_dwordx2 s[24:25], s[0:1], 80")
    A("s_and_b32 s65, s2, 7")
    A("s_lshr_b32 s66, s2, 3")
    A("s_lshr_b32 s67, s66, 3")
    A("s_lshl_b32 s68, s65, 2")
    A(f"s_add_u32 s{sH}, s67, s68")
    A(f"s_and_b32 s{sR}, s66, 7")
    A(f"s_lshr_b32 s{sB}, s{sR}, 1")
    A(f"s_and_b32 s{sS}, s66, 1")
    A("s_lshl_b32 s67, s67, 1")
    A(f"s_add_u32 s67, s67, s{sS}")
    A("s_mul_i32 s68, s65, 7")
    A("s_add_u32 s68, s68, s67")
    A("s_cmp_eq_u32 s65, 7")
    A("s_cselect_b32 s69, 56, 57")
    A("s_cmp_ge_u32 s65, 6")
    A("s_cselect_b32 s69, s69, 63")
    A("s_cmp_lt_u32 s67, 7")
    A(f"s_cselect_b32 s{sU}, s68, s69")
    A(f"s_lshl_b32 s{sP}, s{sH}, 1")
    A(f"s_add_u32 s{sP}, s{sP}, s{sS}")
    A(f"s_lshl_b32 s65, s{sB}, 5")
    A(f"s_add_u32 s65, s65, s{sH}")
    A("s_lshl_b32 s65, s65, 21")
    A(f"s_lshl_b32 s66, s{sS}, 18")
    A("s_add_u32 s65, s65, s66")
    A(f"s_add_u32 s26, s65, {6144*256}")
    for i in range(4): A(f"s_mov_b32 s{80+i}, {i*4096}")
    A("s_mov_b32 s84, 0")
    A("s_mov_b32 s85, 0")
    A("v_and_b32 v1, 63, v0")
    A("v_lshrrev_b32 v7, 6, v0")
    A("v_lshlrev_b32 v8, 4, v1")
    A(f"v_readfirstlane_b32 s{sW}, v7")
    A(f"v_lshl_add_u32 v{vKV}, v7, 10, v8")
    A("v_lshrrev_b32 v9, 4, v1")
    A("v_and_b32 v10, 15, v1")
    A("v_lshl_add_u32 v11, v7, 3, v9")
    A(f"s_lshl_b32 s65, s{sR}, 6")
    A("v_add_u32 v11, s65, v11")
    A("v_lshlrev_b32 v11, 13, v11")
    A(f"v_lshl_add_u32 v{vWQ}, v10, 4, v11")
    A("v_lshrrev_b32 v11, 2, v1")
    A("v_lshl_add_u32 v11, v7, 6, v11")
    A("v_mul_u32_u24 v11, 2752, v11")
    A("v_and_b32 v12, 3, v1")
    A(f"v_lshl_add_u32 v{vW1}, v12, 4, v11")
    A("v_mov_b32 v13, 0")
    A("s_waitcnt lgkmcnt(0)")
    A(f"s_or_b32 s65, s2, s{sW}")
    A("s_cmp_lg_u32 s65, 0")
    A("s_cbranch_scc1 L_noep")
    A("s_memrealtime s[90:91]")
    A("s_waitcnt lgkmcnt(0)")
    A("s_or_b32 s90, s90, 1")
    A("v_mov_b32 v12, s90")
    A("global_store_dword v13, v12, s[22:23] sc0 sc1")
    A("L_noep:")
    srd(A, X_, 4, None, 4096)
    A(f"s_cmp_ge_u32 s{sW}, 4")
    A("s_cbranch_scc1 L_nox")
    A(f"s_lshl_b32 s65, s{sW}, 10")
    A(f"buffer_load_dwordx4 v[{P}:{P+3}], v8, s[{X_}:{X_+3}], s65 offen")
    A("L_nox:")
    A(f"s_lshl_b32 s65, s{sH}, 8")
    A(f"s_sub_u32 s66, {512*8192}, s65")
    srd(A, WQ_, 10, 65, "s66")
    srd(A, K_, 6, 26, 262144)

    def ld(name, reg, vaddr, srd_, soff, off, fl):
        o = f" offset:{off}" if off else ""
        vm.issue(name, f"buffer_load_dwordx4 v[{reg}:{reg+3}], v{vaddr}, s[{srd_}:{srd_+3}], {soff} offen{o} {fl}")
    def kv(kind, t):
        reg = (TLO + 4 * t) if t < 16 else (THI + 4 * (t - 16))
        so = 84 if kind == "k" else 85
        ld(f"{kind}{t}", reg, vKV, K_ if kind == "k" else V_, f"s{so}", 0, LD)
        if t < 31: A(f"s_add_u32 s{so}, s{so}, 8192")
    def w2(i): ld(f"w2{i}", Wr + 4 * i, vW2, W2_, "0", i * 1024, WLD)
    def wo(t): ld(f"wo{t}", TLO + 4 * t, vWO, WO_, f"s{80+t//4}", (t % 4) * 1024, WLD)
    consumers = {}; pending = []; ready = set()
    def run_consumers():
        for n in list(pending):
            if n in vm.q: continue
            c = consumers.get(n)
            if c is None:
                pending.remove(n); continue
            cond, fn = c
            if cond is None or cond in ready:
                if not nocons or n.startswith("w1"): fn()
                pending.remove(n)
    def issue(fn, name, w=None):
        w = W if w is None else w
        if vm.outstanding() >= w:
            tgt = vm.q[vm.outstanding() - w]
            vm.wait(tgt)
            run_consumers()
        fn(); pending.append(name)
    def drain_to(name):
        vm.wait(name); run_consumers()
    def kcons(t):
        reg = (TLO + 4 * t) if t < 16 else (THI + 4 * (t - 16)); p = P + (t % 16)
        A(f"v_dot2_f32_bf16 v{p}, v{reg}, v{Q}, 0")
        for r in range(1, 4): A(f"v_dot2_f32_bf16 v{p}, v{reg+r}, v{Q+r}, v{p}")
    for t in range(32): consumers[f"k{t}"] = ("q" if t < 16 else "q2", (lambda t=t: kcons(t)))
    for t in range(32):
        reg = (TLO + 4 * t) if t < 16 else (THI + 4 * (t - 16))
        consumers[f"v{t}"] = ("p", (lambda t=t, reg=reg: acc8(A, accA, PL0 if t < 16 else PL1, PH0 if t < 16 else PH1, reg, f"row_newbcast:{t%16}")))
    def iss(item, w=None):
        kind, t = item
        fn = {"k": lambda: kv("k", t), "v": lambda: kv("v", t), "w2": lambda: w2(t), "wo": lambda: wo(t)}[kind]
        issue(fn, f"{kind}{t}", w)
    kn = [0]
    def kmore(n, w=None):
        for _ in range(n):
            if kn[0] < 32:
                iss(("k", kn[0]), w); kn[0] += 1

    if prio: A(f"s_setprio {prio}")
    nafter_x = 0
    ld("wq0", WQD, vWQ, WQ_, "0", 0, WLD)
    A("s_mov_b32 s65, 32768")
    ld("wq1", WQD + 4, vWQ, WQ_, "s65", 0, WLD)
    kmore(N0, 99)
    A("v_and_b32 v11, 1, v1")
    A("v_cmp_ne_u32 s[70:71], 0, v11")
    A("v_and_b32 v11, 2, v1")
    A("v_cmp_ne_u32 s[72:73], 0, v11")
    A(f"v_mul_u32_u24 v11, {FC//8*1024}, v7")
    A(f"v_add_u32 v{vW2}, v11, v8")
    A(f"v_lshl_add_u32 v{vWO}, v7, 14, v8")
    srd(A, V_, 8, 26, 262144)
    NU = (1376 + FC - 1) // FC
    A(f"s_mul_i32 s65, s{sU}, {FC*2}")
    A(f"s_sub_u32 s66, {512*2752}, s65")
    A(f"s_cmp_lt_u32 s{sU}, {NU}")
    A("s_cselect_b32 s66, s66, 0")
    A("s_cselect_b32 s65, s65, 0")
    srd(A, W1_, 16, 65, "s66")
    A(f"s_mul_i32 s65, s{sU}, {FC*1024}")
    A(f"s_sub_u32 s66, {1376*1024}, s65")
    A(f"s_cmp_lt_u32 s{sU}, {NU}")
    A("s_cselect_b32 s66, s66, 0")
    A("s_cselect_b32 s65, s65, 0")
    srd(A, W2_, 18, 65, "s66")
    A(f"s_lshl_b32 s65, s{sH}, 17")
    srd(A, WO_, 12, 65, 131072)
    srd(A, WS_, 24, None, 0x200000)
    for i in range(4): A(f"s_mov_b32 s{SEL_INS+i}, {0x07060500 | i}")
    A(f"s_mov_b32 s{SEL_G0}, 0x0c0c0400")
    A(f"s_mov_b32 s{SEL_G1}, 0x04000c0c")
    A(f"v_lshlrev_b32 v15, 3, v10")
    A(f"v_mov_b32 v{accA}, 0xff800000")
    A(f"v_mov_b32 v{accA+1}, 0")
    A(f"ds_write_b64 v15, v[{accA}:{accA+1}] offset:{ML}")
    A(f"ds_write_b32 v15, v{accA+1} offset:{CNT}")
    A.c("layernorm")
    A(f"s_cmp_ge_u32 s{sW}, 4")
    A("s_cbranch_scc1 L_noln")
    A(f"s_waitcnt vmcnt({vm.outstanding()})")
    F = P + 4; t0 = P + 12; zt = Z
    for i in range(4):
        A(f"v_lshlrev_b32 v{F+2*i}, 16, v{P+i}")
        A(f"v_and_b32 v{F+2*i+1}, 0xffff0000, v{P+i}")
    A(f"v_add_f32 v{t0}, v{F}, v{F+1}")
    for i in range(2, 8): A(f"v_add_f32 v{t0}, v{t0}, v{F+i}")
    wave_reduce(A, t0, "v_add_f32", 65)
    A(f"v_mov_b32 v{t0+1}, s65")
    A(f"v_mul_f32 v{t0+1}, 0x3b000000, v{t0+1}")
    A(f"v_sub_f32 v{t0+2}, v{F}, v{t0+1}")
    A(f"v_mul_f32 v{t0}, v{t0+2}, v{t0+2}")
    for i in range(1, 8):
        A(f"v_sub_f32 v{t0+2}, v{F+i}, v{t0+1}")
        A(f"v_fmac_f32 v{t0}, v{t0+2}, v{t0+2}")
    wave_reduce(A, t0, "v_add_f32", 65)
    A(f"v_mov_b32 v{t0+2}, s65")
    A(f"v_mul_f32 v{t0+2}, 0x3b000000, v{t0+2}")
    bf16r(A, t0 + 1, t0 + 1)
    bf16r(A, t0 + 2, t0 + 2)
    A(f"v_add_f32 v{t0+2}, 0x3727c5ac, v{t0+2}")
    bf16r(A, t0 + 2, t0 + 2)
    A(f"v_sqrt_f32 v{t0+2}, v{t0+2}")
    bf16r(A, t0 + 2, t0 + 2)
    A(f"v_rcp_f32 v{t0+3}, v{t0+2}")
    for i in range(8): A(f"v_sub_f32 v{F+i}, v{F+i}, v{t0+1}")
    for i in range(0, 8, 2): A(f"v_cvt_pk_bf16_f32 v{P+i//2}, v{F+i}, v{F+i+1}")
    for i in range(4):
        A(f"v_lshlrev_b32 v{F+2*i}, 16, v{P+i}")
        A(f"v_and_b32 v{F+2*i+1}, 0xffff0000, v{P+i}")
    for i in range(8): A(f"v_mul_f32 v{zt+i}, v{F+i}, v{t0+3}")
    for i in range(8): A(f"v_fma_f32 v{F+i}, -v{zt+i}, v{t0+2}, v{F+i}")
    for i in range(8): A(f"v_fmac_f32 v{zt+i}, v{F+i}, v{t0+3}")
    for i in range(0, 8, 2): A(f"v_cvt_pk_bf16_f32 v{P+i//2}, v{zt+i}, v{zt+i+1}")
    A("v_lshl_add_u32 v11, v7, 10, v8")
    A(f"ds_write_b128 v11, v[{P}:{P+3}] offset:{XN}")
    A("L_noln:")
    A("v_and_b32 v11, 1, v10")
    A("v_lshl_add_u32 v11, v11, 2, v9")
    A("v_lshl_add_u32 v11, v7, 3, v11")
    A(f"s_lshl_b32 s65, s{sR}, 6")
    A("v_add_u32 v11, s65, v11")
    A("v_lshlrev_b32 v11, 1, v11")
    A("v_bfe_u32 v12, v10, 1, 2")
    A("v_lshl_add_u32 v11, v12, 10, v11")
    A("v_and_b32 v12, 3, v1")
    A("v_lshlrev_b32 v12, 4, v12")
    A("v_lshrrev_b32 v14, 2, v1")
    A("v_add_u32 v12, v12, v14")
    A("v_lshl_add_u32 v12, v7, 6, v12")
    A("v_lshlrev_b32 v12, 1, v12")
    A(f"s_lshl_b32 s65, s{sB}, 10")
    A("v_add_u32 v12, s65, v12")
    zero(A, accB, 8)
    A("s_waitcnt lgkmcnt(0)")
    if not nobar: A("s_barrier")
    stamp("b0")
    A(f"ds_read_u16 v{XL}, v11 offset:{XN}")
    A(f"ds_read_u16 v{HL}, v12 offset:{XN}")
    vm.issue("ep", f"global_load_dword v{vEp}, v13, s[22:23] sc1"); pending.append("ep")
    A("v_and_b32 v11, 1, v10")
    A("v_lshl_add_u32 v11, v11, 2, v9")
    A(f"s_lshl_b32 s65, s{sP}, 3")
    A(f"s_lshl_b32 s66, s{sB}, 9")
    A("s_add_u32 s65, s65, s66")
    A("v_add_u32 v11, s65, v11")
    A("v_lshlrev_b32 v11, 1, v11")
    vm.issue("xf", f"buffer_load_ushort v{vX}, v11, s[{X_}:{X_+3}], 0 offen"); pending.append("xf")
    kmore(N1, 99)
    zero(A, accQ, 32)
    A("s_waitcnt lgkmcnt(0)")
    A(f"v_lshlrev_b32 v{XH}, 16, v{XL}")
    A(f"v_lshlrev_b32 v{HH}, 16, v{HL}")
    vm.wait("wq1")
    for t in range(2):
        for b in range(4): acc8(A, accQ + 8 * b, XL, XH, WQD + 4 * t, f"row_newbcast:{2*b+t}")
    kmore(N2, 99)
    for b in range(4): greduce(A, accQ + 8 * b)
    A("v_lshlrev_b32 v11, 5, v10")
    A("v_lshl_add_u32 v11, v9, 3, v11")
    A("v_lshl_add_u32 v14, v7, 9, v11")
    A("v_lshl_add_u32 v12, v7, 11, v11")
    for b in range(4): A(f"ds_write_b64 v12, v[{accQ+8*b}:{accQ+8*b+1}] offset:{YP + b*512}")
    A("v_lshl_add_u32 v11, v7, 4, v1")
    A("v_lshlrev_b32 v12, 4, v11")
    A("v_lshrrev_b32 v13, 5, v11")
    A("v_lshlrev_b32 v13, 12, v13")
    A("v_and_b32 v11, 31, v11")
    A("v_lshl_add_u32 v13, v11, 4, v13")
    A("s_waitcnt lgkmcnt(0)")
    if not nobar: A("s_barrier")
    stamp("b1")
    if PUBFIRST: A("s_setprio 3")
    A("s_mov_b64 exec, 0xffff")
    for w in range(8): A(f"ds_read_b128 v[{Z+4*w}:{Z+4*w+3}], v12 offset:{YP + w*2048}")
    A("s_mov_b64 exec, -1")
    if not PUBFIRST: kmore(N3, 99)
    vm.wait("ep")
    for n in ("ep", "xf", "wq0", "wq1", "w10", "w11", "w12", "w13"):
        if n in pending and n not in vm.q: pending.remove(n)
    A(f"v_readfirstlane_b32 s{sE}, v{vEp}")
    A(f"s_cmp_lg_u32 s{sE}, 0")
    A("s_cbranch_scc1 L_ep_ok")
    A("s_mov_b32 s65, 0")
    A("v_mov_b32 v11, 0")
    A("L_ep_loop:")
    A(f"global_load_dword v{vEp}, v11, s[22:23] sc1")
    A("s_waitcnt vmcnt(0)")
    A(f"v_readfirstlane_b32 s{sE}, v{vEp}")
    A("s_add_u32 s65, s65, 1")
    A(f"s_cmp_ge_u32 s65, {SPIN_CAP}")
    A("s_cbranch_scc1 L_ep_ok")
    A(f"s_cmp_eq_u32 s{sE}, 0")
    A("s_cbranch_scc1 L_ep_loop")
    dbgcount(1, 65)
    A("L_ep_ok:")
    A(f"v_mov_b32 v{vEp}, s{sE}")
    A(f"s_lshl_b32 s65, s{sH}, 14")
    A(f"s_lshl_b32 s66, s{sR}, 9")
    A("s_add_u32 s65, s65, s66")
    A(f"s_add_u32 s65, s65, {WS_Q}")
    A("s_waitcnt lgkmcnt(0)")
    for (a, b) in ((0, 1), (2, 3), (4, 5), (6, 7), (0, 2), (4, 6), (0, 4)):
        for e in (0, 2):
            A(f"v_pk_add_f32 v[{Z+4*a+e}:{Z+4*a+e+1}], v[{Z+4*a+e}:{Z+4*a+e+1}], v[{Z+4*b+e}:{Z+4*b+e+1}]")
    for i in range(4): A(f"v_perm_b32 v{Z+i}, v{Z+i}, v{vEp}, s{SEL_INS+i}")
    A("s_mov_b64 exec, 0xffff")
    if not nopub: A(f"buffer_store_dwordx4 v[{Z}:{Z+3}], v13, s[{WS_}:{WS_+3}], s65 offen {STF}")
    A("s_mov_b64 exec, -1")
    if PUBFIRST:
        A("s_setprio 0")
        kmore(N3, 99)
    stamp("q_pub")
    A(f"s_lshl_b32 s65, s{sH}, 2")
    A(f"s_add_u32 s65, s65, s{sB}")
    A("s_lshl_b32 s65, s65, 12")
    A(f"s_add_u32 s26, s65, {WS_Q}")
    kmore(W1AT - kn[0])
    A("s_mov_b32 s69, 0")
    def w1ld(i):
        if FC == 24: A("s_mov_b64 exec, s[78:79]") if not stamps else A("s_mov_b64 exec, s[90:91]")
        ld(f"w1{i}", Wr + 4 * i, vW1, W1_, "s69", 0, WLD)
        if FC == 24: A("s_mov_b64 exec, -1")
        if i < 3: A(f"s_add_u32 s69, s69, {16*2752}")
    mreg = 78 if not stamps else 90
    A(f"s_mov_b32 s{mreg}, 0x77777777")
    A(f"s_mov_b32 s{mreg+1}, 0x77777777")
    def w1cons(i):
        acc8(A, accB, HL, HH, Wr + 4 * i, f"quad_perm:[{i},{i},{i},{i}]")
        if i == 3:
            greduce(A, accB)
            for e in range(2): A(f"v_add_f32_dpp v{accB+e}, v{accB+e}, v{accB+e} row_ror:4 {DPPM}")
            for e in range(2): A(f"v_add_f32_dpp v{accB+e}, v{accB+e}, v{accB+e} row_ror:8 {DPPM}")
            A("v_and_b32 v12, 3, v10")
            A("v_lshlrev_b32 v12, 5, v12")
            A("v_lshl_add_u32 v12, v9, 3, v12")
            A("v_lshl_add_u32 v12, v7, 7, v12")
            A(f"ds_write_b64 v12, v[{accB}:{accB+1}] offset:{HP}")
            A("v_mov_b32 v12, 0")
            A(f"v_mov_b32 v{accB+2}, 1")
            A("s_mov_b64 exec, 1")
            A(f"ds_add_u32 v12, v{accB+2} offset:{CNT+8}")
            A("s_mov_b64 exec, -1")
    for i in range(4):
        consumers[f"w1{i}"] = (None, (lambda i=i: w1cons(i)))
        if skipffn: w1cons(i)
        else: issue(lambda i=i: w1ld(i), f"w1{i}")
    kmore(GQ - kn[0])
    def tagcheck(f, t):
        A(f"v_perm_b32 v{t}, v{f+1}, v{f}, s{SEL_G0}")
        A(f"v_perm_b32 v{t+1}, v{f+3}, v{f+2}, s{SEL_G1}")
        A(f"v_or_b32 v{t}, v{t}, v{t+1}")
    A("v_lshl_add_u32 v13, v7, 10, v8")
    A(f"s_cmp_ge_u32 s{sW}, {0 if nopub else 4}")
    A("s_cbranch_scc1 L_nogq")
    A(f"buffer_load_dwordx4 v[{GQD}:{GQD+3}], v13, s[{WS_}:{WS_+3}], s26 offen sc1")
    A("L_nogq:")
    n_before = len(vm.log)
    kmore(GQW)
    nafter = len(vm.log) - n_before
    A(f"s_cmp_ge_u32 s{sW}, {0 if nopub else 4}")
    A("s_cbranch_scc1 L_nogq2")
    A(f"s_waitcnt vmcnt({nafter})")
    tagcheck(GQD, P)
    A(f"v_cmp_ne_u32 s[90:91], v{P}, v{vEp}")
    A("s_cmp_eq_u64 s[90:91], 0")
    A("s_cbranch_scc1 L_gq_ok")
    A("s_mov_b32 s65, 0")
    A("L_gq_loop:")
    A(f"buffer_load_dwordx4 v[{GQD}:{GQD+3}], v13, s[{WS_}:{WS_+3}], s26 offen sc1")
    A("s_waitcnt vmcnt(0)")
    tagcheck(GQD, P)
    A(f"v_cmp_ne_u32 s[90:91], v{P}, v{vEp}")
    A("s_add_u32 s65, s65, 1")
    A(f"s_cmp_ge_u32 s65, {SPIN_CAP}")
    A("s_cbranch_scc1 L_gq_ok")
    A("s_cmp_lg_u64 s[90:91], 0")
    A("s_cbranch_scc1 L_gq_loop")
    dbgcount(2, 65)
    A("L_gq_ok:")
    A(f"v_permlane32_swap_b32 v{GQD}, v{GQD+2}")
    A(f"v_permlane32_swap_b32 v{GQD+1}, v{GQD+3}")
    A(f"v_add_f32 v{GQD}, v{GQD}, v{GQD+2}")
    A(f"v_add_f32 v{GQD+1}, v{GQD+1}, v{GQD+3}")
    A("v_and_b32 v11, 31, v1")
    A("v_lshlrev_b32 v11, 4, v11")
    A("v_lshrrev_b32 v12, 5, v1")
    A("v_lshl_add_u32 v11, v12, 3, v11")
    A("v_lshl_add_u32 v11, v7, 9, v11")
    A(f"ds_write_b64 v11, v[{GQD}:{GQD+1}] offset:{QP}")
    A("v_mov_b32 v12, 0")
    A(f"v_mov_b32 v{GQD+2}, 1")
    A("s_mov_b64 exec, 1")
    A(f"ds_add_u32 v12, v{GQD+2} offset:{CNT+16}")
    A("s_mov_b64 exec, -1")
    A("L_nogq2:")
    kmore(32 - kn[0])
    run_consumers()
    if any(n.startswith("w1") for n in pending):
        drain_to([n for n in pending if n.startswith("w1")][-1])
    assert not any(n.startswith("w1") for n in pending), pending
    A("v_mov_b32 v11, 0")
    A("s_mov_b32 s65, 0")
    A("L_q_loop:")
    A(f"ds_read_b32 v{P}, v11 offset:{CNT+16}")
    A("s_waitcnt lgkmcnt(0)")
    A(f"v_readfirstlane_b32 s66, v{P}")
    A("s_add_u32 s65, s65, 1")
    A(f"s_cmp_ge_u32 s65, {SPIN_CAP}")
    A("s_cbranch_scc1 L_q_ok")
    A(f"s_cmp_lg_u32 s66, {0 if nopub else 4}")
    A("s_cbranch_scc1 L_q_loop")
    A("L_q_ok:")
    dbgcount(3, 65)
    A("v_lshlrev_b32 v11, 5, v10")
    regs = [P + 4 * i for i in range(4)] + [Z + 4 * i for i in range(4)]
    for w in range(4):
        A(f"ds_read_b128 v[{regs[2*w]}:{regs[2*w]+3}], v11 offset:{QP + w*512}")
        A(f"ds_read_b128 v[{regs[2*w+1]}:{regs[2*w+1]+3}], v11 offset:{QP + w*512 + 16}")
    A("s_waitcnt lgkmcnt(0)")
    for (a, b) in ((0, 1), (2, 3), (0, 2)):
        for half in range(2):
            for e in (0, 2):
                ra, rb = regs[2*a+half] + e, regs[2*b+half] + e
                A(f"v_pk_add_f32 v[{ra}:{ra+1}], v[{ra}:{ra+1}], v[{rb}:{rb+1}]")
    A(f"v_cvt_pk_bf16_f32 v{Q}, v{regs[0]}, v{regs[0]+1}")
    A(f"v_cvt_pk_bf16_f32 v{Q+1}, v{regs[0]+2}, v{regs[0]+3}")
    A(f"v_cvt_pk_bf16_f32 v{Q+2}, v{regs[1]}, v{regs[1]+1}")
    A(f"v_cvt_pk_bf16_f32 v{Q+3}, v{regs[1]+2}, v{regs[1]+3}")
    stamp("q_ready")
    A.c("K phase")
    ready.add("q")
    rest = ([] if skipffn else [("w2", i) for i in range(FC // 8)]) + [("v", t) for t in range(16)]
    idx = 0
    def lo_done(): return not any(f"k{t}" in pending for t in range(16))
    run_consumers()
    while not lo_done():
        nxt = [n for n in pending if n.startswith("k")][0]
        drain_to(nxt)
    treduce(A, P, None, R0)
    ready.add("q2")
    def k_all_consumed(): return not any(n.startswith("k") for n in pending)
    while not k_all_consumed():
        run_consumers()
        if k_all_consumed(): break
        if idx < len(rest):
            iss(rest[idx], WV); idx += 1
        else:
            nxt = [n for n in pending if n.startswith("k")][0]
            drain_to(nxt)
    treduce(A, P, None, R1)
    stamp("k_done")
    while idx < len(rest) and vm.outstanding() < WV:
        iss(rest[idx], WV); idx += 1
    A(f"v_cvt_pk_bf16_f32 v{P}, v{R0}, v{R1}")
    A(f"v_lshlrev_b32 v{R0}, 16, v{P}")
    A(f"v_and_b32 v{R1}, 0xffff0000, v{P}")
    A(f"v_mul_f32 v{R0}, 0x3db504f3, v{R0}")
    A(f"v_mul_f32 v{R1}, 0x3db504f3, v{R1}")
    A(f"v_cvt_pk_bf16_f32 v{P}, v{R0}, v{R1}")
    A(f"v_lshlrev_b32 v{R0}, 16, v{P}")
    A(f"v_and_b32 v{R1}, 0xffff0000, v{P}")
    A(f"v_max_f32 v{P}, v{R0}, v{R1}")
    wave_reduce(A, P, "v_max_f32", 65)
    A(f"v_subrev_f32 v{R0}, s65, v{R0}")
    A(f"v_subrev_f32 v{R1}, s65, v{R1}")
    A(f"v_mul_f32 v{R0}, 0x3fb8aa3b, v{R0}")
    A(f"v_mul_f32 v{R1}, 0x3fb8aa3b, v{R1}")
    A(f"v_exp_f32 v{R0}, v{R0}")
    A(f"v_exp_f32 v{R1}, v{R1}")
    A(f"v_cvt_pk_bf16_f32 v{P}, v{R0}, v{R1}")
    A(f"v_and_b32 v{PL0}, 0xffff, v{P}")
    A(f"v_lshlrev_b32 v{PH0}, 16, v{P}")
    A(f"v_lshrrev_b32 v{PL1}, 16, v{P}")
    A(f"v_and_b32 v{PH1}, 0xffff0000, v{P}")
    A(f"v_add_f32 v{P+1}, v{R0}, v{R1}")
    wave_reduce(A, P + 1, "v_add_f32", 66)
    A(f"v_mov_b32 v{P+2}, s65")
    A(f"v_mov_b32 v{P+3}, s66")
    A(f"v_lshlrev_b32 v11, 3, v7")
    A(f"ds_write_b64 v11, v[{P+2}:{P+3}] offset:{ML}")
    A("v_mov_b32 v11, 0")
    A(f"v_mov_b32 v{P+4}, 1")
    A("s_mov_b64 exec, 1")
    A(f"ds_add_rtn_u32 v{P+5}, v11, v{P+4} offset:{CNT}")
    A("s_mov_b64 exec, -1")
    zero(A, accA, 8)
    A("v_and_b32 v12, 7, v1")
    A("v_lshlrev_b32 v12, 3, v12")
    A(f"s_lshl_b32 s67, s{sB}, 5")
    A(f"s_add_u32 s67, s67, s{sH}")
    A("s_lshl_b32 s67, s67, 1")
    A(f"s_add_u32 s67, s67, s{sS}")
    A("s_waitcnt lgkmcnt(0)")
    A(f"v_readfirstlane_b32 s65, v{P+5}")
    A("s_cmp_lg_u32 s65, 7")
    A("s_cbranch_scc1 L_notlast")
    A(f"ds_read_b64 v[{P+6}:{P+7}], v12 offset:{ML}")
    A("s_waitcnt lgkmcnt(0)")
    A(f"v_mov_b32 v{P+8}, v{P+6}")
    for d in ("quad_perm:[1,0,3,2]", "quad_perm:[2,3,0,1]", "row_half_mirror"):
        A(f"v_max_f32_dpp v{P+8}, v{P+8}, v{P+8} {d} {DPPM}")
    A(f"v_sub_f32 v{P+6}, v{P+6}, v{P+8}")
    A(f"v_mul_f32 v{P+6}, 0x3fb8aa3b, v{P+6}")
    A(f"v_exp_f32 v{P+6}, v{P+6}")
    A(f"v_mul_f32 v{P+9}, v{P+7}, v{P+6}")
    for d in ("quad_perm:[1,0,3,2]", "quad_perm:[2,3,0,1]", "row_half_mirror"):
        A(f"v_add_f32_dpp v{P+9}, v{P+9}, v{P+9} {d} {DPPM}")
    A(f"v_mov_b32 v{P+10}, s{sE}")
    A(f"v_not_b32 v{P+11}, v{P+10}")
    A("s_lshl_b32 s65, s67, 4")
    A(f"s_add_u32 s65, s65, {WS_ML}")
    A("s_mov_b64 exec, 1")
    A(f"buffer_store_dwordx4 v[{P+8}:{P+11}], v11, s[{WS_}:{WS_+3}], s65 offen {STF}")
    A("s_mov_b64 exec, -1")
    A("s_nop 1")
    A("L_notlast:")
    A("v_mov_b32 v11, 0")
    A("s_mov_b32 s65, 0")
    A("L_h_loop:")
    A(f"ds_read_b32 v{P}, v11 offset:{CNT+8}")
    A("s_waitcnt lgkmcnt(0)")
    A(f"v_readfirstlane_b32 s66, v{P}")
    A("s_add_u32 s65, s65, 1")
    A(f"s_cmp_ge_u32 s65, {SPIN_CAP}")
    A("s_cbranch_scc1 L_h_ok")
    A("s_cmp_lg_u32 s66, 8")
    A("s_cbranch_scc1 L_h_loop")
    A("L_h_ok:")
    dbgcount(4, 65)
    A("v_and_b32 v12, 3, v10")
    A(f"v_mul_u32_u24 v13, {FC//8}, v7")
    A("v_add_u32 v12, v12, v13")
    A("v_lshlrev_b32 v12, 2, v12")
    for w in range(8): A(f"ds_read_b32 v{P+w}, v12 offset:{HP + w*128}")
    A("s_waitcnt lgkmcnt(0)")
    for w in range(1, 8): A(f"v_add_f32 v{P}, v{P}, v{P+w}")
    bf16r(A, P, P)
    A(f"v_mul_f32 v{P+1}, 0xbfb8aa3b, v{P}")
    A(f"v_exp_f32 v{P+1}, v{P+1}")
    A(f"v_add_f32 v{P+1}, 1.0, v{P+1}")
    A(f"v_rcp_f32 v{P+1}, v{P+1}")
    A(f"v_mul_f32 v{P}, v{P}, v{P+1}")
    A(f"v_cvt_pk_bf16_f32 v{HL}, v{P}, v{P}")
    A(f"v_and_b32 v{HL}, 0xffff, v{HL}")
    A(f"v_lshlrev_b32 v{HH}, 16, v{HL}")
    ready.add("p")
    stamp("p_done")
    def w2cons(i):
        if i == 0: zero(A, accB, 8)
        acc8(A, accB, HL, HH, Wr + 4 * i, f"row_newbcast:{i}")
    for i in range(FC // 8): consumers[f"w2{i}"] = ("p", (lambda i=i: w2cons(i)))
    for i in range(FC // 8):
        nm = f"w2{i}"
        issued = (("w2", i) not in rest[idx:]) and not skipffn
        if issued and nm not in pending: pending.insert(0, nm)
    w2p = sorted([n for n in pending if n.startswith("w2")]); oth = [n for n in pending if not n.startswith("w2")]
    pending[:] = w2p + oth
    run_consumers()
    A.c("V phase")
    tail_seq = rest[idx:]
    for t in range(16): tail_seq += [("v", 16 + t)] + ([] if skipwo else [("wo", t)])
    for it in tail_seq:
        kind, t = it
        if kind == "wo":
            nm = f"v{t}"
            if nm in pending:
                vm.wait(nm); run_consumers()
        run_consumers()
        iss(it, WV)
    A("s_xor_b32 s65, s67, 1")
    A("s_lshl_b32 s65, s65, 4")
    A(f"s_add_u32 s26, s65, {WS_ML}")
    A("v_mov_b32 v11, 0")
    issue(lambda: vm.issue("pm", f"buffer_load_dwordx4 v[{Z}:{Z+3}], v11, s[{WS_}:{WS_+3}], s26 offen sc1"), "pm", WV)
    while any(n.startswith(("v", "w2")) for n in pending):
        nxt = [n for n in pending if n.startswith(("v", "w2"))][0]
        drain_to(nxt)
    stamp("v_done")
    A.c("tail")
    greduce(A, accA)
    A(f"ds_write_b64 v14, v[{accA}:{accA+1}] offset:{OP}")
    A("v_lshl_add_u32 v12, v7, 4, v10")
    A("v_lshlrev_b32 v12, 2, v12")
    vm.wait("pm")
    A(f"v_readfirstlane_b32 s65, v{Z+2}")
    A(f"s_cmp_eq_u32 s65, s{sE}")
    A("s_cbranch_scc1 L_pm_ok")
    A("s_mov_b32 s66, 0")
    A("L_pm_loop:")
    A(f"buffer_load_dwordx4 v[{Z}:{Z+3}], v11, s[{WS_}:{WS_+3}], s26 offen sc1")
    A("s_waitcnt vmcnt(0)")
    A(f"v_readfirstlane_b32 s65, v{Z+2}")
    A("s_add_u32 s66, s66, 1")
    A(f"s_cmp_ge_u32 s66, {SPIN_CAP}")
    A("s_cbranch_scc1 L_pm_ok")
    A(f"s_cmp_lg_u32 s65, s{sE}")
    A("s_cbranch_scc1 L_pm_loop")
    dbgcount(5, 66)
    A("L_pm_ok:")
    A(f"ds_write_b64 v11, v[{Z}:{Z+1}] offset:{ML+64}")
    A("s_waitcnt lgkmcnt(0)")
    A("s_barrier")
    stamp("b3")
    A(f"ds_read_b64 v[{P+8}:{P+9}], v15 offset:{ML}")
    for w in range(8): A(f"ds_read_b32 v{P+w}, v12 offset:{OP + w*512}")
    lg(8)
    A(f"v_mov_b32 v{P+10}, v{P+8}")
    for d in ("quad_perm:[1,0,3,2]", "quad_perm:[2,3,0,1]", "row_half_mirror", "row_mirror"):
        A(f"v_max_f32_dpp v{P+10}, v{P+10}, v{P+10} {d} {DPPM}")
    A(f"v_sub_f32 v{P+8}, v{P+8}, v{P+10}")
    A(f"v_mul_f32 v{P+8}, 0x3fb8aa3b, v{P+8}")
    A(f"v_exp_f32 v{P+8}, v{P+8}")
    A(f"v_mul_f32 v{P+9}, v{P+9}, v{P+8}")
    for d in ("quad_perm:[1,0,3,2]", "quad_perm:[2,3,0,1]", "row_half_mirror", "row_mirror"):
        A(f"v_add_f32_dpp v{P+9}, v{P+9}, v{P+9} {d} {DPPM}")
    A(f"v_rcp_f32 v{P+9}, v{P+9}")
    A(f"v_mul_f32 v{P+8}, v{P+8}, v{P+9}")
    A("s_waitcnt lgkmcnt(0)")
    A(f"v_mul_f32_dpp v{P+10}, v{P+8}, v{P} row_newbcast:0 {DPPM}")
    for w in range(1, 8): A(f"v_fmac_f32_dpp v{P+10}, v{P+8}, v{P+w} row_newbcast:{w} {DPPM}")
    A(f"v_cvt_pk_bf16_f32 v{XL}, v{P+10}, v{P+10}")
    A(f"v_and_b32 v{XL}, 0xffff, v{XL}")
    A(f"v_lshlrev_b32 v{XH}, 16, v{XL}")
    for t in range(16):
        vm.wait(f"wo{t}")
        acc8(A, accB, XL, XH, TLO + 4 * t, f"row_newbcast:{t}")
    A("v_lshlrev_b32 v11, 5, v1")
    A("v_lshl_add_u32 v13, v7, 11, v11")
    A("v_lshl_add_u32 v11, v7, 4, v1")
    A("v_lshlrev_b32 v12, 4, v11")
    A("v_lshrrev_b32 v14, 1, v11")
    A("v_lshlrev_b32 v14, 11, v14")
    A("v_and_b32 v11, 1, v11")
    A("v_lshl_add_u32 v14, v11, 4, v14")
    A(f"ds_write_b128 v13, v[{accB}:{accB+3}] offset:{YP}")
    A(f"ds_write_b128 v13, v[{accB+4}:{accB+7}] offset:{YP+16}")
    A(f"s_lshl_b32 s65, s{sB}, 17")
    A(f"s_lshl_b32 s66, s{sP}, 5")
    A("s_add_u32 s65, s65, s66")
    A("s_waitcnt lgkmcnt(0)")
    A("s_barrier")
    stamp("b4")
    A("s_mov_b64 exec, 0xffff")
    for w in range(8): A(f"ds_read_b128 v[{Z+4*w}:{Z+4*w+3}], v12 offset:{YP + w*2048}")
    A("s_waitcnt lgkmcnt(0)")
    for (a, b) in ((0, 1), (2, 3), (4, 5), (6, 7), (0, 2), (4, 6), (0, 4)):
        for e in (0, 2):
            A(f"v_pk_add_f32 v[{Z+4*a+e}:{Z+4*a+e+1}], v[{Z+4*a+e}:{Z+4*a+e+1}], v[{Z+4*b+e}:{Z+4*b+e+1}]")
    for i in range(4): A(f"v_perm_b32 v{Z+i}, v{Z+i}, v{vEp}, s{SEL_INS+i}")
    A(f"buffer_store_dwordx4 v[{Z}:{Z+3}], v14, s[{WS_}:{WS_+3}], s65 offen {STF}")
    A("s_mov_b64 exec, -1")
    stamp("y_sent")
    A(f"s_cmp_lg_u32 s{sW}, 0")
    A("s_cbranch_scc1 L_fin_skip")
    A(f"s_lshl_b32 s65, s{sB}, 6")
    A(f"s_add_u32 s65, s65, s{sP}")
    A("s_lshl_b32 s65, s65, 11")
    A("s_mov_b64 s[66:67], -1")
    A("s_mov_b64 s[68:69], -1")
    A("s_mov_b32 s26, 0")
    FA, FB = P, P + 4
    A("L_fin_loop:")
    A("s_mov_b64 exec, s[66:67]")
    A(f"buffer_load_dwordx4 v[{FA}:{FA+3}], v8, s[{WS_}:{WS_+3}], s65 offen sc1")
    A("s_mov_b64 exec, s[68:69]")
    A(f"buffer_load_dwordx4 v[{FB}:{FB+3}], v8, s[{WS_}:{WS_+3}], s65 offen offset:1024 sc1")
    A("s_mov_b64 exec, -1")
    A("s_waitcnt vmcnt(0)")
    tagcheck(FA, P + 8); tagcheck(FB, P + 10)
    A(f"v_cmp_ne_u32 s[66:67], v{P+8}, v{vEp}")
    A(f"v_cmp_ne_u32 s[68:69], v{P+10}, v{vEp}")
    A("s_or_b64 s[90:91], s[66:67], s[68:69]")
    A("s_cbranch_scc0 L_fin_done")
    if sleep: A(f"s_sleep {sleep}")
    A("s_add_u32 s26, s26, 1")
    A(f"s_cmp_lt_u32 s26, {SPIN_CAP}")
    A("s_cbranch_scc1 L_fin_loop")
    A("L_fin_done:")
    dbgcount(6, 26)
    stamp("polled")
    for e in range(4): A(f"v_add_f32 v{FA+e}, v{FA+e}, v{FB+e}")
    A(f"v_permlane32_swap_b32 v{FA}, v{FA+2}")
    A(f"v_permlane32_swap_b32 v{FA+1}, v{FA+3}")
    A(f"v_add_f32 v{FA}, v{FA}, v{FA+2}")
    A(f"v_add_f32 v{FA+1}, v{FA+1}, v{FA+3}")
    A(f"v_permlane16_swap_b32 v{FA}, v{FA+1}")
    A(f"v_add_f32 v{FA}, v{FA}, v{FA+1}")
    for d in ("quad_perm:[2,3,0,1]", "row_ror:4", "row_ror:8"):
        A(f"v_add_f32_dpp v{FA}, v{FA}, v{FA} {d} {DPPM}")
    A(f"v_lshlrev_b32 v{vX}, 16, v{vX}")
    A(f"v_add_f32 v{FA}, v{FA}, v{vX}")
    A(f"v_cvt_pk_bf16_f32 v{FA}, v{FA}, v{FA}")
    A("v_and_b32 v11, 1, v10")
    A("v_lshl_add_u32 v11, v11, 2, v9")
    A(f"s_lshl_b32 s65, s{sP}, 3")
    A(f"s_lshl_b32 s66, s{sB}, 9")
    A("s_add_u32 s65, s65, s66")
    A("v_add_u32 v11, s65, v11")
    A("v_lshlrev_b32 v11, 1, v11")
    A("s_mov_b32 s66, 0x00030003")
    A("s_mov_b32 exec_lo, s66")
    A("s_mov_b32 exec_hi, s66")
    A(f"global_store_short v11, v{FA}, s[20:21]")
    A("s_mov_b64 exec, -1")
    A("L_fin_skip:")
    if stamps:
        stamp("end")
        A("s_waitcnt lgkmcnt(0)")
        for i in range(len(STAMP_NAMES)): A(f"v_writelane_b32 v255, s{STREGS[i]}, {i}")
        A(f"s_and_b32 s68, s{sW}, 3")
        A("s_cmp_eq_u32 s68, 0")
        A("s_cbranch_scc0 L_main_end")
        A(f"s_lshr_b32 s68, s{sW}, 2")
        A("s_lshl_b32 s68, s68, 16")
        A("s_lshl_b32 s69, s2, 8")
        A("s_add_u32 s68, s68, s69")
        A("s_add_u32 s68, s68, 0x180000")
        A("v_lshlrev_b32 v12, 2, v1")
        A(f"buffer_store_dword v255, v12, s[{WS_}:{WS_+3}], s68 offen")
        A("s_add_u32 s68, s68, 0x20000")
        A(f"buffer_store_dword v254, v12, s[{WS_}:{WS_+3}], s68 offen")
    A("L_main_end:")
    A("s_endpgm")
    return A

def build(**kw):
    m = gen_main(**kw)
    s = HEADER
    s += f"; @launch grid=(256,1,1) block=(512,1,1) lds={LDS_TOTAL}\n"
    s += '.amdgcn_target "amdgcn-amd-amdhsa--gfx950"\n.text\n'
    nm = NAME + "_kernel"
    s += f".globl {nm}\n.p2align 8\n.type {nm},@function\n{nm}:\n" + m.text()
    s += '.section .rodata,"a"\n.p2align 6\n'
    s += kd(nm, 256, 102)
    return s

if __name__ == "__main__":
    out = sys.argv[1] if len(sys.argv) > 1 else f"cdna_kernels/{NAME}.s"
    kw = {}
    for a in sys.argv[2:]:
        if "=" in a:
            k, v = a.split("=", 1)
            kw[k] = int(v) if v.lstrip("-").isdigit() else v
    if "stamps" in sys.argv: kw["stamps"] = True
    open(out, "w").write(build(**kw))
    if STAMP_NAMES: open(out + ".stamps", "w").write(",".join(STAMP_NAMES))
    print("written", out)
```

```python
import sys
from asmlib import Asm
from gen1 import (NAME, HEADER, VM, DPPM, acc8, zero, greduce, wave_reduce, treduce, bf16r, srd, kd)
STAMP_NAMES = []

XN = 0
QS = 4096
ML = QS + 256
CNT = ML + 128
ZR = CNT + 128
OBP = 272; HBP = 80
OB = ZR
HB = OB + 16 * OBP
SC = HB + 16 * HBP
HLOC = ZR + 8192
YP = HLOC + 8192
SPITCH = 144
WSCR = YP + 16384
LDS_TOTAL = WSCR + 8 * 32 * SPITCH

WS_Y = 0
WS_ML = 0x80000
WS_Q = 0x90000
WS_H = 0x110000
WS_ST = 0x180000
SPIN_CAP = 200000

def gen_main(LD="nt", WLD="nt", stamps=False, W=6, WV=None, N0=4, N1=4, N2=2, N2B=1, N3=3, GQ=20, GQW=6, VML=16,
             RK=3, RV=2, NWZ=12, STF="sc1", sleep=0, notail=0, skipwo=0, PUBW=3, GQWV=1, GHWV=2, HBMWIN=0):
    A = Asm(); vm = VM(A)
    accA, accB, Q, XL, XH, HL, HH = 16, 24, 32, 36, 37, 38, 39
    R0, R1, PL0, PH0, PL1, PH1 = 40, 41, 42, 43, 44, 45
    vX, vEp = 46, 47
    P, Wr, TLO, THI, Z = 48, 64, 80, 144, 208
    accQ, WQD, W1D = Z, Z + 32, Z + 40
    accH = [Wr, Wr + 8, accA, accB]
    vKV, vWQ, vW1, vWO = 2, 3, 4, 6
    vSW, vSR = 4, 5
    D = 24
    K_, V_, WQ_, W1_, W2_, WO_, X_, WS_ = 28, 32, 36, 40, 44, 48, 52, 56
    sB, sH, sS, sP, sW, sE, sR = 60, 61, 62, 63, 64, 27, 3
    SEL_INS, SEL_G0, SEL_G1 = 92, 96, 97
    STREGS = [74, 76, 78, 88, 98, 100, 14, 4, 6, 8, 10, 12, 16, 18]
    WV = W if WV is None else WV
    def stamp(label=""):
        if not stamps: return
        r = STREGS[len(STAMP_NAMES)]
        A(f"s_memrealtime s[{r}:{r+1}]")
        STAMP_NAMES.append(label)
    def lg(n): A(f"s_waitcnt lgkmcnt({0 if stamps else n})")
    lbl = [0]
    def only_wave(w):
        lbl[0] += 1; L = f"L_skip{lbl[0]}"
        A(f"s_cmp_lg_u32 s{sW}, {w}"); A(f"s_cbranch_scc1 {L}")
        return L
    def spin_lds(off, target, name):
        A("v_mov_b32 v11, 0"); A("s_mov_b32 s65, 0")
        A(f"L_{name}_loop:")
        A(f"ds_read_b32 v12, v11 offset:{off}")
        A("s_waitcnt lgkmcnt(0)")
        A("v_readfirstlane_b32 s66, v12")
        A("s_add_u32 s65, s65, 1")
        A(f"s_cmp_ge_u32 s65, {SPIN_CAP}")
        A(f"s_cbranch_scc1 L_{name}_ok")
        A(f"s_cmp_lg_u32 s66, {target}")
        A(f"s_cbranch_scc1 L_{name}_loop")
        A(f"L_{name}_ok:")
    def lds_flag(off, tmp, add=True):
        A("v_mov_b32 v12, 0"); A(f"v_mov_b32 v{tmp}, 1")
        A("s_mov_b64 exec, 1")
        A(f"ds_add_u32 v12, v{tmp} offset:{off}")
        A("s_mov_b64 exec, -1")
    def tagcheck(f, t):
        A(f"v_perm_b32 v{t}, v{f+1}, v{f}, s{SEL_G0}")
        A(f"v_perm_b32 v{t+1}, v{f+3}, v{f+2}, s{SEL_G1}")
        A(f"v_or_b32 v{t}, v{t}, v{t+1}")
    def sum8(base):
        for (a, b) in ((0, 1), (2, 3), (4, 5), (6, 7), (0, 2), (4, 6), (0, 4)):
            for e in (0, 2):
                A(f"v_pk_add_f32 v[{base+4*a+e}:{base+4*a+e+1}], v[{base+4*a+e}:{base+4*a+e+1}], v[{base+4*b+e}:{base+4*b+e+1}]")

    A("s_cmp_ge_u32 s2, 256")
    A("s_cbranch_scc1 L_main_end")
    stamp("entry")
    A("s_load_dwordx16 s[4:19], s[0:1], 0")
    A("s_load_dwordx4 s[20:23], s[0:1], 64")
    A("s_load_dwordx2 s[24:25], s[0:1], 80")
    A("s_and_b32 s65, s2, 7")
    A("s_lshr_b32 s66, s2, 3")
    A("s_lshr_b32 s67, s66, 3")
    A("s_lshl_b32 s68, s65, 2")
    A(f"s_add_u32 s{sH}, s67, s68")
    A(f"s_and_b32 s{sR}, s66, 7")
    A(f"s_lshr_b32 s{sB}, s{sR}, 1")
    A(f"s_and_b32 s{sS}, s66, 1")
    A(f"s_lshl_b32 s{sP}, s{sH}, 1")
    A(f"s_add_u32 s{sP}, s{sP}, s{sS}")
    A(f"s_lshl_b32 s65, s{sB}, 5")
    A(f"s_add_u32 s65, s65, s{sH}")
    A("s_lshl_b32 s65, s65, 21")
    A(f"s_lshl_b32 s66, s{sS}, 18")
    A("s_add_u32 s65, s65, s66")
    A(f"s_add_u32 s26, s65, {6144*256}")
    A("s_mov_b32 s84, 0")
    A("s_mov_b32 s85, 0")
    A("v_and_b32 v1, 63, v0")
    A("v_lshrrev_b32 v7, 6, v0")
    A("v_lshlrev_b32 v8, 4, v1")
    A(f"v_readfirstlane_b32 s{sW}, v7")
    A(f"v_lshl_add_u32 v{vKV}, v7, 10, v8")
    A("v_lshrrev_b32 v9, 4, v1")
    A("v_and_b32 v10, 15, v1")
    A(f"s_lshl_b32 s65, s{sR}, 6")
    A("v_lshlrev_b32 v13, 3, v7")
    A("v_add_u32 v13, s65, v13")
    A("v_add_u32 v11, v13, v9")
    A("v_lshlrev_b32 v11, 13, v11")
    A(f"v_lshl_add_u32 v{vWQ}, v10, 4, v11")
    A("v_lshrrev_b32 v11, 3, v1")
    A("v_add_u32 v11, v13, v11")
    A("v_mul_u32_u24 v11, 2752, v11")
    A("v_and_b32 v12, 7, v1")
    A(f"v_lshl_add_u32 v{vW1}, v12, 4, v11")
    A("v_mov_b32 v13, 0")
    A("s_waitcnt lgkmcnt(0)")
    srd(A, K_, 6, 26, 262144)

    def ld(name, reg, vaddr, srd_, soff, off, fl):
        o = f" offset:{off}" if off else ""
        vm.issue(name, f"buffer_load_dwordx4 v[{reg}:{reg+3}], v{vaddr}, s[{srd_}:{srd_+3}], {soff} offen{o} {fl}")
    def kv(kind, t):
        reg = (TLO + 4 * t) if t < 16 else (THI + 4 * (t - 16))
        so = 84 if kind == "k" else 85
        ld(f"{kind}{t}", reg, vKV, K_ if kind == "k" else V_, f"s{so}", 0, LD)
        if t < 31: A(f"s_add_u32 s{so}, s{so}, 8192")
    def w2(i): ld(f"w2{i}", Wr + 4 * i, vWO, W2_, f"s{80+i}", 0, WLD)
    def woreg(t): return (Z + 4 * t) if t < NWZ else (Wr + 4 * (t - NWZ))
    def wo(t):
        ld(f"wo{t}", woreg(t), vWO, WO_, "s83", 0, WLD)
        if t < 15: A("s_add_u32 s83, s83, 8192")
    def transpose(base, nraw):
        for i in range(4):
            if i < nraw: A(f"ds_write_b128 v{vSW}, v[{base+4*i}:{base+4*i+3}] offset:{i*8*SPITCH}")
            else:
                zero(A, base + 4 * i, 4)
                A(f"ds_write_b128 v{vSW}, v[{base+4*i}:{base+4*i+3}] offset:{i*8*SPITCH}")
        for nt in range(4):
            for half in range(2):
                A(f"ds_read_b64_tr_b16 v[{base+4*nt+2*half}:{base+4*nt+2*half+1}], v{vSR} offset:{half*4*SPITCH + nt*32}")
    consumers = {}; pending = []; ready = set(); done = set()
    def run_consumers():
        for n in list(pending):
            if n in vm.q: continue
            c = consumers.get(n)
            if c is None:
                pending.remove(n); continue
            cond, fn = c
            if cond is None or cond in ready:
                fn(); pending.remove(n)
    def issue(fn, name, w=None):
        w = W if w is None else w
        if HBMWIN and w < 90:
            isaux = not name.startswith(("k", "v"))
            hb_idx = [i for i, n in enumerate(vm.q) if n.startswith(("k", "v")) and not n.startswith("w")]
            if not isaux and len(hb_idx) >= w:
                vm.wait(vm.q[hb_idx[len(hb_idx) - w]]); run_consumers()
        elif vm.outstanding() >= w:
            vm.wait(vm.q[vm.outstanding() - w]); run_consumers()
        fn(); pending.append(name)
    def drain_to(name):
        vm.wait(name); run_consumers()
    def kcons(t):
        reg = (TLO + 4 * t) if t < 16 else (THI + 4 * (t - 16)); p = P + (t % 16)
        A(f"v_dot2_f32_bf16 v{p}, v{reg}, v{Q}, 0")
        for r in range(1, 4): A(f"v_dot2_f32_bf16 v{p}, v{reg+r}, v{Q+r}, v{p}")
    for t in range(32): consumers[f"k{t}"] = ("q" if t < 16 else "q2", (lambda t=t: kcons(t)))
    for t in range(32):
        reg = (TLO + 4 * t) if t < 16 else (THI + 4 * (t - 16))
        consumers[f"v{t}"] = ("p", (lambda t=t, reg=reg: acc8(A, accA, PL0 if t < 16 else PL1, PH0 if t < 16 else PH1, reg, f"row_newbcast:{t%16}")))
    kn = [0]; aux = []; hb = [0]
    def auxstep(R, w):
        hb[0] += 1
        if R and hb[0] % R == 0 and aux:
            name, fn, cond = aux[0]
            if cond is None or cond():
                aux.pop(0); issue(fn, name, w)
    def kmore(n, w=None):
        for _ in range(n):
            if kn[0] < 32:
                t = kn[0]; issue(lambda: kv("k", t), f"k{t}", w); kn[0] += 1
                auxstep(RK, w)
    def viss(t, w): issue(lambda: kv("v", t), f"v{t}", w)

    kmore(2, 99)
    A(f"s_or_b32 s65, s2, s{sW}")
    A("s_cmp_lg_u32 s65, 0")
    A("s_cbranch_scc1 L_noep")
    A("s_memrealtime s[90:91]")
    A("s_waitcnt lgkmcnt(0)")
    A("s_or_b32 s90, s90, 1")
    A("v_mov_b32 v12, s90")
    A("global_store_dword v13, v12, s[22:23] sc0 sc1")
    A("L_noep:")
    srd(A, X_, 4, None, 4096)
    A(f"s_cmp_ge_u32 s{sW}, 4")
    A("s_cbranch_scc1 L_nox")
    A(f"s_lshl_b32 s65, s{sW}, 10")
    A(f"buffer_load_dwordx4 v[{P}:{P+3}], v8, s[{X_}:{X_+3}], s65 offen")
    A("L_nox:")
    n_x = len(vm.log)
    A(f"s_lshl_b32 s65, s{sH}, 8")
    A(f"s_sub_u32 s66, {512*8192}, s65")
    srd(A, WQ_, 10, 65, "s66")
    ld("wq0", WQD, vWQ, WQ_, "0", 0, WLD)
    A("s_mov_b32 s65, 32768")
    ld("wq1", WQD + 4, vWQ, WQ_, "s65", 0, WLD)
    A(f"s_mul_i32 s65, s{sH}, 96")
    A(f"s_sub_u32 s66, {512*2752}, s65")
    A(f"s_cmp_lt_u32 s{sH}, 29")
    A("s_cselect_b32 s66, s66, 0")
    A("s_cselect_b32 s65, s65, 0")
    srd(A, W1_, 16, 65, "s66")
    A("s_mov_b32 exec_lo, 0x3f3f3f3f"); A("s_mov_b32 exec_hi, 0x3f3f3f3f")
    ld("w1", W1D, vW1, W1_, "0", 0, WLD)
    A("s_mov_b64 exec, -1")
    kmore(N0 - 2, 99)
    for i in range(3): A(f"s_mov_b32 s{80+i}, {i*8192}")
    A("s_mov_b32 s83, 0")
    A("v_and_b32 v11, 1, v1")
    A("v_cmp_ne_u32 s[70:71], 0, v11")
    A("v_and_b32 v11, 2, v1")
    A("v_cmp_ne_u32 s[72:73], 0, v11")
    A("v_lshrrev_b32 v11, 3, v1")
    A("v_lshlrev_b32 v11, 10, v11")
    A("v_lshl_add_u32 v11, v7, 7, v11")
    A("v_and_b32 v12, 7, v1")
    A(f"v_lshl_add_u32 v{vWO}, v12, 4, v11")
    A("v_lshrrev_b32 v11, 2, v10")
    A("v_lshl_add_u32 v11, v9, 3, v11")
    A(f"v_mul_u32_u24 v11, {SPITCH}, v11")
    A("v_and_b32 v12, 3, v10")
    A("v_lshl_add_u32 v11, v12, 3, v11")
    A(f"v_mul_u32_u24 v12, {32*SPITCH}, v7")
    A("v_add_u32 v11, v11, v12")
    A(f"v_add_u32 v{vSR}, {WSCR}, v11")
    srd(A, V_, 8, 26, 262144)
    A(f"s_mul_i32 s65, s{sP}, {24*1024}")
    A(f"s_sub_u32 s66, {1376*1024}, s65")
    A(f"s_cmp_lt_u32 s{sP}, 58")
    A("s_cselect_b32 s66, s66, 0")
    A("s_cselect_b32 s65, s65, 0")
    srd(A, W2_, 18, 65, "s66")
    A(f"s_lshl_b32 s65, s{sH}, 17")
    srd(A, WO_, 12, 65, 131072)
    srd(A, WS_, 24, None, 0x200000)
    for i in range(4): A(f"s_mov_b32 s{SEL_INS+i}, {0x07060500 | i}")
    A(f"s_mov_b32 s{SEL_G0}, 0x0c0c0400")
    A(f"s_mov_b32 s{SEL_G1}, 0x04000c0c")
    A(f"v_lshlrev_b32 v15, 3, v10")
    A(f"v_mov_b32 v{accA}, 0xff800000")
    A(f"v_mov_b32 v{accA+1}, 0")
    A(f"ds_write_b64 v15, v[{accA}:{accA+1}] offset:{ML}")
    A(f"ds_write_b32 v15, v{accA+1} offset:{CNT}")
    zero(A, accB, 4)
    A("v_lshlrev_b32 v11, 4, v0")
    A(f"ds_write_b128 v11, v[{accB}:{accB+3}] offset:{ZR}")
    A.c("layernorm")
    A(f"s_cmp_ge_u32 s{sW}, 4")
    A("s_cbranch_scc1 L_noln")
    A(f"s_waitcnt vmcnt({len(vm.log) - n_x})")
    F = P + 4; t0 = P + 12; zt = Z
    for i in range(4):
        A(f"v_lshlrev_b32 v{F+2*i}, 16, v{P+i}")
        A(f"v_and_b32 v{F+2*i+1}, 0xffff0000, v{P+i}")
    A(f"v_add_f32 v{t0}, v{F}, v{F+1}")
    for i in range(2, 8): A(f"v_add_f32 v{t0}, v{t0}, v{F+i}")
    wave_reduce(A, t0, "v_add_f32", 65)
    A(f"v_mov_b32 v{t0+1}, s65")
    A(f"v_mul_f32 v{t0+1}, 0x3b000000, v{t0+1}")
    A(f"v_sub_f32 v{t0+2}, v{F}, v{t0+1}")
    A(f"v_mul_f32 v{t0}, v{t0+2}, v{t0+2}")
    for i in range(1, 8):
        A(f"v_sub_f32 v{t0+2}, v{F+i}, v{t0+1}")
        A(f"v_fmac_f32 v{t0}, v{t0+2}, v{t0+2}")
    wave_reduce(A, t0, "v_add_f32", 65)
    A(f"v_mov_b32 v{t0+2}, s65")
    A(f"v_mul_f32 v{t0+2}, 0x3b000000, v{t0+2}")
    bf16r(A, t0 + 1, t0 + 1)
    bf16r(A, t0 + 2, t0 + 2)
    A(f"v_add_f32 v{t0+2}, 0x3727c5ac, v{t0+2}")
    bf16r(A, t0 + 2, t0 + 2)
    A(f"v_sqrt_f32 v{t0+2}, v{t0+2}")
    bf16r(A, t0 + 2, t0 + 2)
    A(f"v_rcp_f32 v{t0+3}, v{t0+2}")
    for i in range(8): A(f"v_sub_f32 v{F+i}, v{F+i}, v{t0+1}")
    for i in range(0, 8, 2): A(f"v_cvt_pk_bf16_f32 v{P+i//2}, v{F+i}, v{F+i+1}")
    for i in range(4):
        A(f"v_lshlrev_b32 v{F+2*i}, 16, v{P+i}")
        A(f"v_and_b32 v{F+2*i+1}, 0xffff0000, v{P+i}")
    for i in range(8): A(f"v_mul_f32 v{zt+i}, v{F+i}, v{t0+3}")
    for i in range(8): A(f"v_fma_f32 v{F+i}, -v{zt+i}, v{t0+2}, v{F+i}")
    for i in range(8): A(f"v_fmac_f32 v{zt+i}, v{F+i}, v{t0+3}")
    for i in range(0, 8, 2): A(f"v_cvt_pk_bf16_f32 v{P+i//2}, v{zt+i}, v{zt+i+1}")
    A("v_lshl_add_u32 v11, v7, 10, v8")
    A(f"ds_write_b128 v11, v[{P}:{P+3}] offset:{XN}")
    A("L_noln:")
    A(f"s_lshl_b32 s65, s{sR}, 6")
    A("v_lshlrev_b32 v13, 3, v7")
    A("v_add_u32 v13, s65, v13")
    A("v_and_b32 v11, 1, v10")
    A("v_lshl_add_u32 v11, v11, 2, v9")
    A("v_add_u32 v11, v11, v13")
    A("v_lshlrev_b32 v11, 1, v11")
    A("v_bfe_u32 v12, v10, 1, 2")
    A("v_lshl_add_u32 v11, v12, 10, v11")
    A("v_lshrrev_b32 v12, 3, v1")
    A("v_add_u32 v12, v12, v13")
    A("v_lshlrev_b32 v12, 1, v12")
    A("v_mov_b32 v13, 0")
    A("s_waitcnt lgkmcnt(0)")
    A("s_barrier")
    stamp("b0")
    A(f"ds_read_u16 v{XL}, v11 offset:{XN}")
    for b in range(4): A(f"ds_read_u16 v{P+b}, v12 offset:{XN + b*1024}")
    L = only_wave(PUBW)
    A(f"global_load_dword v{vEp}, v13, s[22:23] sc1")
    A(f"{L}:")
    L = only_wave(0)
    A("v_and_b32 v11, 1, v10")
    A("v_lshl_add_u32 v11, v11, 2, v9")
    A(f"s_lshl_b32 s65, s{sP}, 3")
    A(f"s_lshl_b32 s66, s{sB}, 9")
    A("s_add_u32 s65, s65, s66")
    A("v_add_u32 v11, s65, v11")
    A("v_lshlrev_b32 v11, 1, v11")
    A(f"buffer_load_ushort v{vX}, v11, s[{X_}:{X_+3}], 0 offen")
    A(f"{L}:")
    n_ep = len(vm.log)
    kmore(N1, 99)
    zero(A, accQ, 32)
    for b in range(4): zero(A, accH[b], 8)
    A("s_waitcnt lgkmcnt(0)")
    A(f"v_lshlrev_b32 v{XH}, 16, v{XL}")
    for b in range(4): A(f"v_lshlrev_b32 v{P+4+b}, 16, v{P+b}")
    vm.wait("wq1")
    for t in range(2):
        for b in range(4): acc8(A, accQ + 8 * b, XL, XH, WQD + 4 * t, f"row_newbcast:{2*b+t}")
    vm.wait("w1")
    for b in range(4):
        for r in range(4):
            A(f"v_dot2c_f32_bf16 v{accH[b]+2*r}, v{P+b}, v{W1D+r}")
            A(f"v_dot2c_f32_bf16 v{accH[b]+2*r+1}, v{P+4+b}, v{W1D+r}")
    kmore(N2, 99)
    for b in range(4): greduce(A, accQ + 8 * b)
    for b in range(4): greduce(A, accH[b])
    for b in range(4):
        for e in range(2): A(f"v_add_f32_dpp v{accH[b]+e}, v{accH[b]+e}, v{accH[b]+e} row_ror:8 {DPPM}")
    A("v_lshlrev_b32 v11, 5, v10")
    A("v_lshl_add_u32 v11, v9, 3, v11")
    A("v_lshl_add_u32 v14, v10, 2, v9")
    A("v_lshlrev_b32 v14, 2, v14")
    A(f"v_mul_u32_u24 v12, {OBP}, v7")
    A("v_add_u32 v14, v14, v12")
    A("v_lshrrev_b32 v12, 3, v1")
    A(f"v_mul_u32_u24 v12, {SPITCH}, v12")
    A("v_and_b32 v13, 7, v1")
    A("v_lshl_add_u32 v12, v13, 4, v12")
    A(f"v_mul_u32_u24 v13, {32*SPITCH}, v7")
    A("v_add_u32 v12, v12, v13")
    A(f"v_add_u32 v{vSW}, {WSCR}, v12")
    A("v_mov_b32 v13, 0")
    A("v_lshl_add_u32 v12, v7, 11, v11")
    for b in range(4): A(f"ds_write_b64 v12, v[{accQ+8*b}:{accQ+8*b+1}] offset:{YP + b*512}")
    A("v_and_b32 v11, 7, v10")
    A("v_lshlrev_b32 v11, 5, v11")
    A("v_lshl_add_u32 v11, v9, 3, v11")
    A("v_lshl_add_u32 v11, v7, 10, v11")
    for b in range(4): A(f"ds_write_b64 v11, v[{accH[b]}:{accH[b]+1}] offset:{HLOC + b*256}")
    kmore(N2B, 99)
    L = only_wave(PUBW)
    A(f"s_waitcnt vmcnt({len(vm.log) - n_ep})")
    A(f"v_readfirstlane_b32 s{sE}, v{vEp}")
    A(f"s_cmp_lg_u32 s{sE}, 0")
    A("s_cbranch_scc1 L_ep_ok")
    A("s_mov_b32 s65, 0")
    A("L_ep_loop:")
    A(f"global_load_dword v{vEp}, v13, s[22:23] sc1")
    A("s_waitcnt vmcnt(0)")
    A(f"v_readfirstlane_b32 s{sE}, v{vEp}")
    A("s_add_u32 s65, s65, 1")
    A(f"s_cmp_ge_u32 s65, {SPIN_CAP}")
    A("s_cbranch_scc1 L_ep_ok")
    A(f"s_cmp_eq_u32 s{sE}, 0")
    A("s_cbranch_scc1 L_ep_loop")
    A("L_ep_ok:")
    A(f"ds_write_b32 v13, v{vEp} offset:{CNT+24}")
    A(f"{L}:")
    A("s_waitcnt lgkmcnt(0)")
    A("s_barrier")
    stamp("b1")
    A(f"ds_read_b32 v{vEp}, v13 offset:{CNT+24}")
    L = only_wave(PUBW)
    A("s_setprio 3")
    for i in range(2):
        for w in range(8): A(f"ds_read_b128 v[{Z+4*w}:{Z+4*w+3}], v8 offset:{YP + i*1024 + w*2048}")
        if i == 0:
            A("v_lshrrev_b32 v11, 5, v1")
            A("v_lshlrev_b32 v11, 12, v11")
            A("v_and_b32 v12, 31, v1")
            A("v_lshl_add_u32 v11, v12, 4, v11")
            A(f"s_lshl_b32 s65, s{sH}, 14")
            A(f"s_lshl_b32 s66, s{sR}, 9")
            A("s_add_u32 s65, s65, s66")
            A(f"s_add_u32 s65, s65, {WS_Q}")
        A("s_waitcnt lgkmcnt(0)")
        sum8(Z)
        for e in range(4): A(f"v_perm_b32 v{P+4*i+e}, v{Z+e}, v{vEp}, s{SEL_INS+e}")
        A(f"buffer_store_dwordx4 v[{P+4*i}:{P+4*i+3}], v11, s[{WS_}:{WS_+3}], s65 offen offset:0 {STF}" if i == 0 else
          f"buffer_store_dwordx4 v[{P+4*i}:{P+4*i+3}], v11, s[{WS_}:{WS_+3}], s66 offen {STF}")
        if i == 0: A("s_add_u32 s66, s65, 8192")
    for w in range(8): A(f"ds_read_b128 v[{Z+4*w}:{Z+4*w+3}], v8 offset:{HLOC + w*1024}")
    A("v_cmp_le_u32 vcc, 6, v10")
    A("v_cndmask_b32 v11, 0, 1, vcc")
    A("v_mul_u32_u24 v12, 6, v11")
    A("v_sub_u32 v12, v10, v12")
    A("v_lshlrev_b32 v12, 4, v12")
    A("v_lshl_add_u32 v12, v11, 10, v12")
    A("v_lshl_add_u32 v12, v9, 11, v12")
    A(f"s_lshl_b32 s65, s{sH}, 13")
    A(f"s_lshl_b32 s66, s{sR}, 7")
    A("s_add_u32 s65, s65, s66")
    A(f"s_add_u32 s65, s65, {WS_H}")
    A("s_waitcnt lgkmcnt(0)")
    sum8(Z)
    for e in range(4): A(f"v_perm_b32 v{P+8+e}, v{Z+e}, v{vEp}, s{SEL_INS+e}")
    A("s_mov_b32 exec_lo, 0x0fff0fff"); A("s_mov_b32 exec_hi, 0x0fff0fff")
    A(f"buffer_store_dwordx4 v[{P+8}:{P+11}], v12, s[{WS_}:{WS_+3}], s65 offen {STF}")
    A("s_mov_b64 exec, -1")
    A("s_setprio 0")
    A(f"{L}:")
    A("s_waitcnt lgkmcnt(0)")
    A(f"v_readfirstlane_b32 s{sE}, v{vEp}")
    kmore(N3, 99)
    stamp("q_pub")
    def w2c(): transpose(Wr, 3); done.add("w2t")
    consumers["w22"] = (None, w2c)
    def woc(kc): transpose(woreg(4 * kc), 4); done.add(f"wot{kc}")
    for kc in range(4): consumers[f"wo{4*kc+3}"] = (None, (lambda kc=kc: woc(kc)))
    for i in range(3): aux.append((f"w2{i}", (lambda i=i: w2(i)), None))
    if not skipwo:
        for t in range(NWZ): aux.append((f"wo{t}", (lambda t=t: wo(t)), None))
        for t in range(NWZ, 16): aux.append((f"wo{t}", (lambda t=t: wo(t)), (lambda: "ffn" in done)))
    GQD = accA
    kmore(GQ - kn[0])
    A(f"s_lshl_b32 s65, s{sH}, 2")
    A(f"s_add_u32 s65, s65, s{sB}")
    A("s_lshl_b32 s26, s65, 12")
    A(f"s_add_u32 s26, s26, {WS_Q}")
    A("s_lshl_b32 s87, s65, 1")
    A(f"s_add_u32 s87, s87, s{sS}")
    A("s_lshl_b32 s87, s87, 10")
    A(f"s_add_u32 s87, s87, {WS_H}")
    def gq_loads():
        for i in range(4): A(f"buffer_load_dwordx4 v[{GQD+4*i}:{GQD+4*i+3}], v8, s[{WS_}:{WS_+3}], s26 offen offset:{i*1024} sc1")
    def gh_load(): A(f"buffer_load_dwordx4 v[{GQD}:{GQD+3}], v8, s[{WS_}:{WS_+3}], s87 offen sc1")
    L = only_wave(GQWV); gq_loads(); A(f"{L}:")
    L = only_wave(GHWV); gh_load(); A(f"{L}:")
    n_g = len(vm.log)
    kmore(GQW)
    nafter = len(vm.log) - n_g
    L = only_wave(GQWV)
    A(f"s_waitcnt vmcnt({nafter})")
    def gqcheck():
        for i in range(4): tagcheck(GQD + 4 * i, P + 2 * i)
        for i in range(4): A(f"v_xor_b32 v{P+2*i}, v{P+2*i}, v{vEp}")
        A(f"v_or3_b32 v{P}, v{P}, v{P+2}, v{P+4}")
        A(f"v_or_b32 v{P}, v{P}, v{P+6}")
        A(f"v_cmp_ne_u32 s[90:91], 0, v{P}")
    gqcheck()
    A("s_cmp_eq_u64 s[90:91], 0")
    A("s_cbranch_scc1 L_gq_ok")
    A("s_mov_b32 s65, 0")
    A("L_gq_loop:")
    gq_loads()
    A("s_waitcnt vmcnt(0)")
    gqcheck()
    A("s_add_u32 s65, s65, 1")
    A(f"s_cmp_ge_u32 s65, {SPIN_CAP}")
    A("s_cbranch_scc1 L_gq_ok")
    A("s_cmp_lg_u64 s[90:91], 0")
    A("s_cbranch_scc1 L_gq_loop")
    A("L_gq_ok:")
    for (a, b) in ((0, 1), (2, 3), (0, 2)):
        for e in (0, 2):
            A(f"v_pk_add_f32 v[{GQD+4*a+e}:{GQD+4*a+e+1}], v[{GQD+4*a+e}:{GQD+4*a+e+1}], v[{GQD+4*b+e}:{GQD+4*b+e+1}]")
    A(f"v_permlane32_swap_b32 v{GQD}, v{GQD+2}")
    A(f"v_permlane32_swap_b32 v{GQD+1}, v{GQD+3}")
    A(f"v_add_f32 v{GQD}, v{GQD}, v{GQD+2}")
    A(f"v_add_f32 v{GQD+1}, v{GQD+1}, v{GQD+3}")
    A(f"v_cvt_pk_bf16_f32 v{GQD}, v{GQD}, v{GQD+1}")
    A("v_and_b32 v11, 31, v1")
    A("v_lshlrev_b32 v11, 1, v11")
    A("v_lshrrev_b32 v12, 5, v1")
    A("v_add_u32 v11, v11, v12")
    A("v_lshlrev_b32 v11, 2, v11")
    A(f"ds_write_b32 v11, v{GQD} offset:{QS}")
    lds_flag(CNT + 16, GQD + 1)
    A(f"{L}:")
    L = only_wave(GHWV)
    A(f"s_waitcnt vmcnt({nafter})")
    A("s_mov_b32 s68, 0x3f3f3f3f"); A("s_mov_b32 s69, 0x3f3f3f3f")
    def ghcheck():
        tagcheck(GQD, P)
        A(f"v_cmp_ne_u32 s[90:91], v{P}, v{vEp}")
        A("s_and_b64 s[90:91], s[90:91], s[68:69]")
    ghcheck()
    A("s_cbranch_scc0 L_gh_ok")
    A("s_mov_b32 s65, 0")
    A("L_gh_loop:")
    gh_load()
    A("s_waitcnt vmcnt(0)")
    ghcheck()
    A("s_cbranch_scc0 L_gh_ok")
    A("s_add_u32 s65, s65, 1")
    A(f"s_cmp_lt_u32 s65, {SPIN_CAP}")
    A("s_cbranch_scc1 L_gh_loop")
    A("L_gh_ok:")
    A(f"v_permlane32_swap_b32 v{GQD}, v{GQD+2}")
    A(f"v_permlane32_swap_b32 v{GQD+1}, v{GQD+3}")
    A(f"v_add_f32 v{GQD}, v{GQD}, v{GQD+2}")
    A(f"v_add_f32 v{GQD+1}, v{GQD+1}, v{GQD+3}")
    A(f"v_permlane16_swap_b32 v{GQD}, v{GQD+1}")
    A(f"v_add_f32 v{GQD}, v{GQD}, v{GQD+1}")
    A(f"v_add_f32_dpp v{GQD}, v{GQD}, v{GQD} row_ror:8 {DPPM}")
    bf16r(A, GQD, GQD)
    A(f"v_mul_f32 v{GQD+1}, 0xbfb8aa3b, v{GQD}")
    A(f"v_exp_f32 v{GQD+1}, v{GQD+1}")
    A(f"v_add_f32 v{GQD+1}, 1.0, v{GQD+1}")
    A(f"v_rcp_f32 v{GQD+1}, v{GQD+1}")
    A(f"v_mul_f32 v{GQD}, v{GQD}, v{GQD+1}")
    A(f"v_cvt_pk_bf16_f32 v{GQD}, v{GQD}, v{GQD}")
    A("v_and_b32 v11, 7, v10")
    A("v_lshl_add_u32 v11, v11, 2, v9")
    A("v_lshlrev_b32 v11, 1, v11")
    A("s_mov_b32 exec_lo, 0x003f003f"); A("s_mov_b32 exec_hi, 0x003f003f")
    A(f"ds_write_b16 v11, v{GQD} offset:{HB + 8*HBP}")
    A("s_mov_b64 exec, -1")
    lds_flag(CNT + 8, GQD + 1)
    A(f"{L}:")
    kmore(32 - kn[0])
    spin_lds(CNT + 16, 1, "q")
    A("v_lshlrev_b32 v11, 4, v10")
    A(f"ds_read_b128 v[{Q}:{Q+3}], v11 offset:{QS}")
    A("s_waitcnt lgkmcnt(0)")
    stamp("q_ready")
    A.c("K phase")
    ready.add("q")
    run_consumers()
    while any(f"k{t}" in pending for t in range(16)):
        drain_to([n for n in pending if n.startswith("k")][0])
    treduce(A, P, None, R0)
    ready.add("q2")
    vn = [0]
    def vmore(w):
        viss(vn[0], w); vn[0] += 1
        auxstep(RV, w)
    while any(n.startswith("k") for n in pending):
        run_consumers()
        if not any(n.startswith("k") for n in pending): break
        if vn[0] < 16: vmore(WV)
        else: drain_to([n for n in pending if n.startswith("k")][0])
    treduce(A, P, None, R1)
    stamp("k_done")
    while vn[0] < 32 and vm.outstanding() < WV: vmore(WV)
    A(f"v_cvt_pk_bf16_f32 v{P}, v{R0}, v{R1}")
    A(f"v_lshlrev_b32 v{R0}, 16, v{P}")
    A(f"v_and_b32 v{R1}, 0xffff0000, v{P}")
    A(f"v_mul_f32 v{R0}, 0x3db504f3, v{R0}")
    A(f"v_mul_f32 v{R1}, 0x3db504f3, v{R1}")
    A(f"v_cvt_pk_bf16_f32 v{P}, v{R0}, v{R1}")
    A(f"v_lshlrev_b32 v{R0}, 16, v{P}")
    A(f"v_and_b32 v{R1}, 0xffff0000, v{P}")
    A(f"v_max_f32 v{P}, v{R0}, v{R1}")
    wave_reduce(A, P, "v_max_f32", 65)
    A(f"v_subrev_f32 v{R0}, s65, v{R0}")
    A(f"v_subrev_f32 v{R1}, s65, v{R1}")
    A(f"v_mul_f32 v{R0}, 0x3fb8aa3b, v{R0}")
    A(f"v_mul_f32 v{R1}, 0x3fb8aa3b, v{R1}")
    A(f"v_exp_f32 v{R0}, v{R0}")
    A(f"v_exp_f32 v{R1}, v{R1}")
    A(f"v_cvt_pk_bf16_f32 v{P}, v{R0}, v{R1}")
    A(f"v_and_b32 v{PL0}, 0xffff, v{P}")
    A(f"v_lshlrev_b32 v{PH0}, 16, v{P}")
    A(f"v_lshrrev_b32 v{PL1}, 16, v{P}")
    A(f"v_and_b32 v{PH1}, 0xffff0000, v{P}")
    A(f"v_add_f32 v{P+1}, v{R0}, v{R1}")
    wave_reduce(A, P + 1, "v_add_f32", 66)
    A(f"v_mov_b32 v{P+2}, s65")
    A(f"v_mov_b32 v{P+3}, s66")
    A(f"v_lshlrev_b32 v11, 3, v7")
    A(f"ds_write_b64 v11, v[{P+2}:{P+3}] offset:{ML}")
    lds_flag(CNT, P + 4)
    zero(A, accA, 8)
    spin_lds(CNT + 8, 1, "h")
    A(f"v_mul_u32_u24 v12, {HBP}, v10")
    A("v_lshl_add_u32 v12, v9, 4, v12")
    A(f"ds_read_b128 v[{P}:{P+3}], v12 offset:{HB}")
    if "w2t" not in done: drain_to("w22")
    assert "w2t" in done
    A("s_waitcnt lgkmcnt(0)")
    for nt in range(4): A(f"v_mfma_f32_16x16x32_bf16 v[{D+4*nt}:{D+4*nt+3}], v[{P}:{P+3}], v[{Wr+4*nt}:{Wr+4*nt+3}], 0")
    done.add("ffn")
    ready.add("p")
    stamp("p_done")
    run_consumers()
    A.c("V phase")
    A(f"s_lshl_b32 s67, s{sB}, 6")
    A(f"s_add_u32 s67, s67, s{sP}")
    def ml_publish():
        L = only_wave(0)
        spin_lds(CNT, 8, "ml")
        A("v_and_b32 v12, 7, v1")
        A("v_lshlrev_b32 v12, 3, v12")
        A(f"ds_read_b64 v[{P+6}:{P+7}], v12 offset:{ML}")
        A("s_waitcnt lgkmcnt(0)")
        A(f"v_mov_b32 v{P+8}, v{P+6}")
        for d in ("quad_perm:[1,0,3,2]", "quad_perm:[2,3,0,1]", "row_half_mirror"):
            A(f"v_max_f32_dpp v{P+8}, v{P+8}, v{P+8} {d} {DPPM}")
        A(f"v_sub_f32 v{P+6}, v{P+6}, v{P+8}")
        A(f"v_mul_f32 v{P+6}, 0x3fb8aa3b, v{P+6}")
        A(f"v_exp_f32 v{P+6}, v{P+6}")
        A(f"v_mul_f32 v{P+9}, v{P+7}, v{P+6}")
        for d in ("quad_perm:[1,0,3,2]", "quad_perm:[2,3,0,1]", "row_half_mirror"):
            A(f"v_add_f32_dpp v{P+9}, v{P+9}, v{P+9} {d} {DPPM}")
        A(f"v_mov_b32 v{P+10}, s{sE}")
        A(f"v_not_b32 v{P+11}, v{P+10}")
        A("s_lshl_b32 s65, s67, 4")
        A(f"s_add_u32 s65, s65, {WS_ML}")
        A("s_mov_b64 exec, 1")
        A(f"buffer_store_dwordx4 v[{P+8}:{P+11}], v11, s[{WS_}:{WS_+3}], s65 offen {STF}")
        A("s_mov_b64 exec, -1")
        A(f"{L}:")
    published = [False]
    while vn[0] < 32:
        if vn[0] >= VML and not published[0]:
            ml_publish(); published[0] = True
        run_consumers()
        vmore(WV)
    if not published[0]: ml_publish()
    while aux:
        name, fn, cond = aux.pop(0)
        assert cond is None or cond()
        issue(fn, name, WV)
    A("s_xor_b32 s65, s67, 1")
    A("s_lshl_b32 s65, s65, 4")
    A(f"s_add_u32 s26, s65, {WS_ML}")
    A("v_mov_b32 v11, 0")
    L = only_wave(0)
    A(f"buffer_load_dwordx4 v[{P+12}:{P+15}], v11, s[{WS_}:{WS_+3}], s26 offen sc1")
    A(f"{L}:")
    while any(n.startswith(("v", "wo")) and n in consumers for n in pending):
        drain_to([n for n in pending if n.startswith(("v", "wo")) and n in consumers][0])
    stamp("v_done")
    if notail:
        A("s_waitcnt vmcnt(0)")
        A("s_branch L_main_end")
    A.c("tail")
    greduce(A, accA)
    A(f"v_cvt_pk_bf16_f32 v{accA}, v{accA}, v{accA+1}")
    A(f"ds_write_b32 v14, v{accA} offset:{OB}")
    A(f"v_mul_u32_u24 v12, {OBP}, v10")
    A("v_lshl_add_u32 v12, v9, 4, v12")
    L = only_wave(0)
    A("s_waitcnt vmcnt(0)")
    A(f"v_readfirstlane_b32 s65, v{P+14}")
    A(f"s_cmp_eq_u32 s65, s{sE}")
    A("s_cbranch_scc1 L_pm_ok")
    A("s_mov_b32 s66, 0")
    A("L_pm_loop:")
    A(f"buffer_load_dwordx4 v[{P+12}:{P+15}], v11, s[{WS_}:{WS_+3}], s26 offen sc1")
    A("s_waitcnt vmcnt(0)")
    A(f"v_readfirstlane_b32 s65, v{P+14}")
    A("s_add_u32 s66, s66, 1")
    A(f"s_cmp_ge_u32 s66, {SPIN_CAP}")
    A("s_cbranch_scc1 L_pm_ok")
    A(f"s_cmp_lg_u32 s65, s{sE}")
    A("s_cbranch_scc1 L_pm_loop")
    A("L_pm_ok:")
    A(f"ds_write_b64 v11, v[{P+12}:{P+13}] offset:{ML+64}")
    A(f"{L}:")
    A("s_waitcnt lgkmcnt(0)")
    A("s_barrier")
    stamp("b3")
    AF = TLO
    A(f"ds_read_b64 v[{P+8}:{P+9}], v15 offset:{ML}")
    for kc in range(4): A(f"ds_read_b128 v[{AF+4*kc}:{AF+4*kc+3}], v12 offset:{OB + kc*64}")
    A("v_lshrrev_b32 v11, 2, v1")
    A("v_lshl_add_u32 v11, v7, 4, v11")
    A("v_lshrrev_b32 v14, 1, v11")
    A("v_lshlrev_b32 v14, 11, v14")
    A("v_and_b32 v11, 1, v11")
    A("v_lshl_add_u32 v14, v11, 4, v14")
    A(f"s_lshl_b32 s65, s{sB}, 17")
    A(f"s_lshl_b32 s66, s{sP}, 5")
    A("s_add_u32 s65, s65, s66")
    A("s_waitcnt lgkmcnt(0)")
    sc = []
    sc.append(f"v_mov_b32 v{P+10}, v{P+8}")
    for d in ("quad_perm:[1,0,3,2]", "quad_perm:[2,3,0,1]", "row_half_mirror", "row_mirror"):
        sc.append(f"v_max_f32_dpp v{P+10}, v{P+10}, v{P+10} {d} {DPPM}")
    sc.append(f"v_sub_f32 v{P+8}, v{P+8}, v{P+10}")
    sc.append(f"v_mul_f32 v{P+8}, 0x3fb8aa3b, v{P+8}")
    sc.append(f"v_exp_f32 v{P+8}, v{P+8}")
    sc.append(f"v_mul_f32 v{P+9}, v{P+9}, v{P+8}")
    for d in ("quad_perm:[1,0,3,2]", "quad_perm:[2,3,0,1]", "row_half_mirror", "row_mirror"):
        sc.append(f"v_add_f32_dpp v{P+9}, v{P+9}, v{P+9} {d} {DPPM}")
    sc.append(f"v_rcp_f32 v{P+9}, v{P+9}")
    sc.append(f"v_cmp_gt_u32 s[70:71], 8, v10")
    sc.append(f"v_cmp_eq_u32 s[72:73], 8, v10")
    sc.append(f"v_mul_f32 v{P+8}, v{P+8}, v{P+9}")
    sc.append(f"v_cndmask_b32 v{P+8}, 0, v{P+8}, s[70:71]")
    sc.append(f"v_cndmask_b32 v{P+8}, v{P+8}, 1.0, s[72:73]")
    sc.append(f"v_lshlrev_b32 v11, 2, v10")
    sc.append(f"ds_write_b32 v11, v{P+8} offset:{SC}")
    sc.append(f"v_lshlrev_b32 v11, 4, v9")
    sc.append(f"ds_read_b128 v[{P}:{P+3}], v11 offset:{SC}")
    mf = []
    for kc in range(4):
        for nt in range(4):
            mf.append(f"v_mfma_f32_16x16x32_bf16 v[{D+4*nt}:{D+4*nt+3}], v[{AF+4*kc}:{AF+4*kc+3}], v[{woreg(4*kc)+4*nt}:{woreg(4*kc)+4*nt+3}], v[{D+4*nt}:{D+4*nt+3}]")
    k = 0
    for m in mf:
        A(m)
        for _ in range(2):
            if k < len(sc): A(sc[k]); k += 1
    while k < len(sc): A(sc[k]); k += 1
    A("s_waitcnt lgkmcnt(0)")
    Y = P + 4
    for nt in range(4):
        A(f"v_mul_f32 v{Y+nt}, v{P}, v{D+4*nt}")
        for r in range(1, 4): A(f"v_fmac_f32 v{Y+nt}, v{P+r}, v{D+4*nt+r}")
    A(f"v_permlane32_swap_b32 v{Y}, v{Y+2}")
    A(f"v_permlane32_swap_b32 v{Y+1}, v{Y+3}")
    A(f"v_add_f32 v{Y}, v{Y}, v{Y+2}")
    A(f"v_add_f32 v{Y+1}, v{Y+1}, v{Y+3}")
    A(f"v_permlane16_swap_b32 v{Y}, v{Y+1}")
    A(f"v_add_f32 v{Y}, v{Y}, v{Y+1}")
    for e in range(1, 4): A(f"v_mov_b32_dpp v{Y+e}, v{Y} quad_perm:[{e},{e},{e},{e}] {DPPM}")
    for e in range(4): A(f"v_perm_b32 v{P+8+e}, v{Y+e}, v{vEp}, s{SEL_INS+e}")
    A("s_mov_b32 exec_lo, 0x11111111"); A("s_mov_b32 exec_hi, 0x11111111")
    A(f"buffer_store_dwordx4 v[{P+8}:{P+11}], v14, s[{WS_}:{WS_+3}], s65 offen {STF}")
    A("s_mov_b64 exec, -1")
    stamp("y_sent")
    A(f"s_cmp_lg_u32 s{sW}, 0")
    A("s_cbranch_scc1 L_fin_skip")
    A("s_lshl_b32 s65, s67, 11")
    A("s_mov_b64 s[66:67], -1")
    A("s_mov_b64 s[68:69], -1")
    A("s_mov_b32 s26, 0")
    FA, FB = P, P + 4
    A("L_fin_loop:")
    A("s_mov_b64 exec, s[66:67]")
    A(f"buffer_load_dwordx4 v[{FA}:{FA+3}], v8, s[{WS_}:{WS_+3}], s65 offen sc1")
    A("s_mov_b64 exec, s[68:69]")
    A(f"buffer_load_dwordx4 v[{FB}:{FB+3}], v8, s[{WS_}:{WS_+3}], s65 offen offset:1024 sc1")
    A("s_mov_b64 exec, -1")
    A("s_waitcnt vmcnt(0)")
    tagcheck(FA, P + 8); tagcheck(FB, P + 10)
    A(f"v_cmp_ne_u32 s[66:67], v{P+8}, v{vEp}")
    A(f"v_cmp_ne_u32 s[68:69], v{P+10}, v{vEp}")
    A("s_or_b64 s[90:91], s[66:67], s[68:69]")
    A("s_cbranch_scc0 L_fin_done")
    if sleep: A(f"s_sleep {sleep}")
    A("s_add_u32 s26, s26, 1")
    A(f"s_cmp_lt_u32 s26, {SPIN_CAP}")
    A("s_cbranch_scc1 L_fin_loop")
    A("L_fin_done:")
    stamp("polled")
    for e in range(4): A(f"v_add_f32 v{FA+e}, v{FA+e}, v{FB+e}")
    A(f"v_permlane32_swap_b32 v{FA}, v{FA+2}")
    A(f"v_permlane32_swap_b32 v{FA+1}, v{FA+3}")
    A(f"v_add_f32 v{FA}, v{FA}, v{FA+2}")
    A(f"v_add_f32 v{FA+1}, v{FA+1}, v{FA+3}")
    A(f"v_permlane16_swap_b32 v{FA}, v{FA+1}")
    A(f"v_add_f32 v{FA}, v{FA}, v{FA+1}")
    for d in ("quad_perm:[2,3,0,1]", "row_ror:4", "row_ror:8"):
        A(f"v_add_f32_dpp v{FA}, v{FA}, v{FA} {d} {DPPM}")
    A(f"v_lshlrev_b32 v{vX}, 16, v{vX}")
    A(f"v_add_f32 v{FA}, v{FA}, v{vX}")
    A(f"v_cvt_pk_bf16_f32 v{FA}, v{FA}, v{FA}")
    A("v_and_b32 v11, 1, v10")
    A("v_lshl_add_u32 v11, v11, 2, v9")
    A(f"s_lshl_b32 s65, s{sP}, 3")
    A(f"s_lshl_b32 s66, s{sB}, 9")
    A("s_add_u32 s65, s65, s66")
    A("v_add_u32 v11, s65, v11")
    A("v_lshlrev_b32 v11, 1, v11")
    A("s_mov_b32 s66, 0x00030003")
    A("s_mov_b32 exec_lo, s66")
    A("s_mov_b32 exec_hi, s66")
    A(f"global_store_short v11, v{FA}, s[20:21]")
    A("s_mov_b64 exec, -1")
    A("L_fin_skip:")
    if stamps:
        stamp("end")
        A("s_waitcnt lgkmcnt(0)")
        for i in range(len(STAMP_NAMES)): A(f"v_writelane_b32 v255, s{STREGS[i]}, {i}")
        A(f"s_lshl_b32 s68, s{sW}, 16")
        A("s_lshl_b32 s69, s2, 8")
        A("s_add_u32 s68, s68, s69")
        A(f"s_add_u32 s68, s68, {WS_ST}")
        A("v_lshlrev_b32 v12, 2, v1")
        A(f"buffer_store_dword v255, v12, s[{WS_}:{WS_+3}], s68 offen")
    A("L_main_end:")
    A("s_endpgm")
    return A

def build(**kw):
    m = gen_main(**kw)
    s = HEADER
    s += f"; @launch grid=(256,1,1) block=(512,1,1) lds={LDS_TOTAL}\n"
    s += '.amdgcn_target "amdgcn-amd-amdhsa--gfx950"\n.text\n'
    nm = NAME + "_kernel"
    s += f".globl {nm}\n.p2align 8\n.type {nm},@function\n{nm}:\n" + m.text()
    s += '.section .rodata,"a"\n.p2align 6\n'
    s += kd(nm, 256, 102)
    return s

if __name__ == "__main__":
    out = sys.argv[1] if len(sys.argv) > 1 else f"cdna_kernels/{NAME}.s"
    kw = {}
    for a in sys.argv[2:]:
        if "=" in a:
            k, v = a.split("=", 1)
            kw[k] = int(v) if v.lstrip("-").isdigit() else v
    if "stamps" in sys.argv: kw["stamps"] = True
    open(out, "w").write(build(**kw))
    if STAMP_NAMES: open(out + ".stamps", "w").write(",".join(STAMP_NAMES))
    print("written", out)
```

```python
import sys
from asmlib import Asm
from gen1 import (NAME, HEADER, VM, DPPM, acc8, zero, greduce, wave_reduce, treduce, bf16r, srd, kd)
STAMP_NAMES = []

XN = 0
QS = 4096
ML = QS + 256
CNT = ML + 128
ZR = CNT + 128
OBP = 272; HBP = 80
OB = ZR
HB = OB + 16 * OBP
SC = HB + 16 * HBP
HLOC = ZR + 8192
YP = HLOC + 8192
SPITCH = 144
WSCR = YP + 16384
LDS_TOTAL = WSCR + 8 * 32 * SPITCH

WS_Y = 0
WS_ML = 0x80000
WS_Q = 0x90000
WS_H = 0x110000
WS_ST = 0x180000
SPIN_CAP = 200000

def gen_main(LD="nt", WLD="nt", stamps=False, W=6, WV=None, N0=4, N1=4, N2=2, N2B=1, N3=3, GQ=20, GQW=6, VML=16,
             RK=3, RV=2, NWZ=12, STF="sc1", sleep=0, notail=0, skipwo=0, PUBW=3, GQWV=1, GHWV=2, HBMWIN=0, N2C=0, nostore=0, nogather=0, noml=0, nopubc=0, PMAT=99, nofin=0, GLF="sc1", skipw=0, nosvc=0, OUTF="", FPOLL=1):
    A = Asm(); vm = VM(A)
    accA, accB, Q, XL, XH, HL, HH = 16, 24, 32, 36, 37, 38, 39
    R0, R1, PL0, PH0, PL1, PH1 = 40, 41, 42, 43, 44, 45
    vX, vEp = 46, 47
    P, Wr, TLO, THI, Z = 48, 64, 80, 144, 208
    accQ, WQD, W1D = Z, Z + 32, Z + 40
    accH = [Wr, Wr + 8, accA, accB]
    vKV, vWQ, vW1, vWO = 2, 3, 4, 6
    vSW, vSR = 4, 5
    D = 24
    K_, V_, WQ_, W1_, W2_, WO_, X_, WS_ = 28, 32, 36, 40, 44, 48, 52, 56
    sB, sH, sS, sP, sW, sE, sR = 60, 61, 62, 63, 64, 27, 3
    SEL_INS, SEL_G0, SEL_G1 = 92, 96, 97
    STREGS = [74, 76, 78, 88, 98, 100, 14, 4, 6, 8, 10, 12, 16, 18]
    WV = W if WV is None else WV
    if nosvc: PUBW = GQWV = GHWV = 99
    if nogather: GQWV = GHWV = 99
    def stamp(label=""):
        if not stamps: return
        r = STREGS[len(STAMP_NAMES)]
        A(f"s_memrealtime s[{r}:{r+1}]")
        STAMP_NAMES.append(label)
    def lg(n): A(f"s_waitcnt lgkmcnt({0 if stamps else n})")
    lbl = [0]
    def only_wave(w):
        lbl[0] += 1; L = f"L_skip{lbl[0]}"
        A(f"s_cmp_lg_u32 s{sW}, {w}"); A(f"s_cbranch_scc1 {L}")
        return L
    def spin_lds(off, target, name):
        A("v_mov_b32 v11, 0"); A("s_mov_b32 s65, 0")
        A(f"L_{name}_loop:")
        A(f"ds_read_b32 v12, v11 offset:{off}")
        A("s_waitcnt lgkmcnt(0)")
        A("v_readfirstlane_b32 s66, v12")
        A("s_add_u32 s65, s65, 1")
        A(f"s_cmp_ge_u32 s65, {SPIN_CAP}")
        A(f"s_cbranch_scc1 L_{name}_ok")
        A(f"s_cmp_lg_u32 s66, {target}")
        A(f"s_cbranch_scc1 L_{name}_loop")
        A(f"L_{name}_ok:")
    def get_epoch(name):
        A("v_mov_b32 v11, 0"); A("s_mov_b32 s65, 0")
        A(f"L_{name}_loop:")
        A(f"ds_read_b32 v{vEp}, v11 offset:{CNT+24}")
        A("s_waitcnt lgkmcnt(0)")
        A(f"v_readfirstlane_b32 s{sE}, v{vEp}")
        A("s_add_u32 s65, s65, 1")
        A(f"s_cmp_ge_u32 s65, {SPIN_CAP}")
        A(f"s_cbranch_scc1 L_{name}_ok")
        A(f"s_cmp_eq_u32 s{sE}, 0")
        A(f"s_cbranch_scc1 L_{name}_loop")
        A(f"L_{name}_ok:")
    def lds_flag(off, tmp, add=True):
        A("v_mov_b32 v12, 0"); A(f"v_mov_b32 v{tmp}, 1")
        A("s_mov_b64 exec, 1")
        A(f"ds_add_u32 v12, v{tmp} offset:{off}")
        A("s_mov_b64 exec, -1")
    def tagcheck(f, t):
        A(f"v_perm_b32 v{t}, v{f+1}, v{f}, s{SEL_G0}")
        A(f"v_perm_b32 v{t+1}, v{f+3}, v{f+2}, s{SEL_G1}")
        A(f"v_or_b32 v{t}, v{t}, v{t+1}")
    def sum8(base):
        for (a, b) in ((0, 1), (2, 3), (4, 5), (6, 7), (0, 2), (4, 6), (0, 4)):
            for e in (0, 2):
                A(f"v_pk_add_f32 v[{base+4*a+e}:{base+4*a+e+1}], v[{base+4*a+e}:{base+4*a+e+1}], v[{base+4*b+e}:{base+4*b+e+1}]")

    A("s_cmp_ge_u32 s2, 256")
    A("s_cbranch_scc1 L_main_end")
    stamp("entry")
    A("s_load_dwordx16 s[4:19], s[0:1], 0")
    A("s_load_dwordx4 s[20:23], s[0:1], 64")
    A("s_load_dwordx2 s[24:25], s[0:1], 80")
    A("s_and_b32 s65, s2, 7")
    A("s_lshr_b32 s66, s2, 3")
    A("s_lshr_b32 s67, s66, 3")
    A("s_lshl_b32 s68, s65, 2")
    A(f"s_add_u32 s{sH}, s67, s68")
    A(f"s_and_b32 s{sR}, s66, 7")
    A(f"s_lshr_b32 s{sB}, s{sR}, 1")
    A(f"s_and_b32 s{sS}, s66, 1")
    A(f"s_lshl_b32 s{sP}, s{sH}, 1")
    A(f"s_add_u32 s{sP}, s{sP}, s{sS}")
    A(f"s_lshl_b32 s65, s{sB}, 5")
    A(f"s_add_u32 s65, s65, s{sH}")
    A("s_lshl_b32 s65, s65, 21")
    A(f"s_lshl_b32 s66, s{sS}, 18")
    A("s_add_u32 s65, s65, s66")
    A(f"s_add_u32 s26, s65, {6144*256}")
    A("s_mov_b32 s84, 0")
    A("s_mov_b32 s85, 0")
    A("v_and_b32 v1, 63, v0")
    A("v_lshrrev_b32 v7, 6, v0")
    A("v_lshlrev_b32 v8, 4, v1")
    A(f"v_readfirstlane_b32 s{sW}, v7")
    A(f"v_lshl_add_u32 v{vKV}, v7, 10, v8")
    A("v_lshrrev_b32 v9, 4, v1")
    A("v_and_b32 v10, 15, v1")
    A(f"s_lshl_b32 s65, s{sR}, 6")
    A("v_lshlrev_b32 v13, 3, v7")
    A("v_add_u32 v13, s65, v13")
    A("v_add_u32 v11, v13, v9")
    A("v_lshlrev_b32 v11, 13, v11")
    A(f"v_lshl_add_u32 v{vWQ}, v10, 4, v11")
    A("v_lshrrev_b32 v11, 3, v1")
    A("v_add_u32 v11, v13, v11")
    A("v_mul_u32_u24 v11, 2752, v11")
    A("v_and_b32 v12, 7, v1")
    A(f"v_lshl_add_u32 v{vW1}, v12, 4, v11")
    A("v_mov_b32 v13, 0")
    A("s_waitcnt lgkmcnt(0)")
    srd(A, K_, 6, 26, 262144)

    def ld(name, reg, vaddr, srd_, soff, off, fl):
        o = f" offset:{off}" if off else ""
        vm.issue(name, f"buffer_load_dwordx4 v[{reg}:{reg+3}], v{vaddr}, s[{srd_}:{srd_+3}], {soff} offen{o} {fl}")
    def kv(kind, t):
        reg = (TLO + 4 * t) if t < 16 else (THI + 4 * (t - 16))
        so = 84 if kind == "k" else 85
        ld(f"{kind}{t}", reg, vKV, K_ if kind == "k" else V_, f"s{so}", 0, LD)
        if t < 31: A(f"s_add_u32 s{so}, s{so}, 8192")
    def w2(i): ld(f"w2{i}", Wr + 4 * i, vWO, W2_, f"s{80+i}", 0, WLD)
    def woreg(t): return (Z + 4 * t) if t < NWZ else (Wr + 4 * (t - NWZ))
    def wo(t):
        ld(f"wo{t}", woreg(t), vWO, WO_, "s83", 0, WLD)
        if t < 15: A("s_add_u32 s83, s83, 8192")
    def transpose(base, nraw):
        for i in range(4):
            if i < nraw: A(f"ds_write_b128 v{vSW}, v[{base+4*i}:{base+4*i+3}] offset:{i*8*SPITCH}")
            else:
                zero(A, base + 4 * i, 4)
                A(f"ds_write_b128 v{vSW}, v[{base+4*i}:{base+4*i+3}] offset:{i*8*SPITCH}")
        for nt in range(4):
            for half in range(2):
                A(f"ds_read_b64_tr_b16 v[{base+4*nt+2*half}:{base+4*nt+2*half+1}], v{vSR} offset:{half*4*SPITCH + nt*32}")
    consumers = {}; pending = []; ready = set(); done = set()
    def run_consumers():
        for n in list(pending):
            if n in vm.q: continue
            c = consumers.get(n)
            if c is None:
                pending.remove(n); continue
            cond, fn = c
            if cond is None or cond in ready:
                fn(); pending.remove(n)
    def issue(fn, name, w=None):
        w = W if w is None else w
        if HBMWIN and w < 90:
            isaux = not name.startswith(("k", "v"))
            hb_idx = [i for i, n in enumerate(vm.q) if n.startswith(("k", "v")) and not n.startswith("w")]
            if not isaux and len(hb_idx) >= w:
                vm.wait(vm.q[hb_idx[len(hb_idx) - w]]); run_consumers()
        elif vm.outstanding() >= w:
            vm.wait(vm.q[vm.outstanding() - w]); run_consumers()
        fn(); pending.append(name)
    def drain_to(name):
        vm.wait(name); run_consumers()
    def kcons(t):
        reg = (TLO + 4 * t) if t < 16 else (THI + 4 * (t - 16)); p = P + (t % 16)
        A(f"v_dot2_f32_bf16 v{p}, v{reg}, v{Q}, 0")
        for r in range(1, 4): A(f"v_dot2_f32_bf16 v{p}, v{reg+r}, v{Q+r}, v{p}")
    for t in range(32): consumers[f"k{t}"] = ("q" if t < 16 else "q2", (lambda t=t: kcons(t)))
    for t in range(32):
        reg = (TLO + 4 * t) if t < 16 else (THI + 4 * (t - 16))
        consumers[f"v{t}"] = ("p", (lambda t=t, reg=reg: acc8(A, accA, PL0 if t < 16 else PL1, PH0 if t < 16 else PH1, reg, f"row_newbcast:{t%16}")))
    kn = [0]; aux = []; hb = [0]
    def auxstep(R, w):
        hb[0] += 1
        if R and hb[0] % R == 0 and aux:
            name, fn, cond = aux[0]
            if cond is None or cond():
                aux.pop(0); issue(fn, name, w)
    def kmore(n, w=None):
        for _ in range(n):
            if kn[0] < 32:
                t = kn[0]; issue(lambda: kv("k", t), f"k{t}", w); kn[0] += 1
                auxstep(RK, w)
    def viss(t, w): issue(lambda: kv("v", t), f"v{t}", w)

    kmore(2, 99)
    A(f"s_or_b32 s65, s2, s{sW}")
    A("s_cmp_lg_u32 s65, 0")
    A("s_cbranch_scc1 L_noep")
    A("s_memrealtime s[90:91]")
    A("s_waitcnt lgkmcnt(0)")
    A("s_or_b32 s90, s90, 1")
    A("v_mov_b32 v12, s90")
    A("global_store_dword v13, v12, s[22:23] sc0 sc1")
    A("L_noep:")
    srd(A, X_, 4, None, 4096)
    A(f"s_cmp_ge_u32 s{sW}, 4")
    A("s_cbranch_scc1 L_nox")
    A(f"s_lshl_b32 s65, s{sW}, 10")
    A(f"buffer_load_dwordx4 v[{P}:{P+3}], v8, s[{X_}:{X_+3}], s65 offen")
    A("L_nox:")
    n_x = len(vm.log)
    A(f"s_lshl_b32 s65, s{sH}, 8")
    A(f"s_sub_u32 s66, {512*8192}, s65")
    srd(A, WQ_, 10, 65, "s66")
    if not skipw:
        ld("wq0", WQD, vWQ, WQ_, "0", 0, WLD)
        A("s_mov_b32 s65, 32768")
        ld("wq1", WQD + 4, vWQ, WQ_, "s65", 0, WLD)
    A(f"s_mul_i32 s65, s{sH}, 96")
    A(f"s_sub_u32 s66, {512*2752}, s65")
    A(f"s_cmp_lt_u32 s{sH}, 29")
    A("s_cselect_b32 s66, s66, 0")
    A("s_cselect_b32 s65, s65, 0")
    srd(A, W1_, 16, 65, "s66")
    A("s_mov_b32 exec_lo, 0x3f3f3f3f"); A("s_mov_b32 exec_hi, 0x3f3f3f3f")
    if not skipw: ld("w1", W1D, vW1, W1_, "0", 0, WLD)
    A("s_mov_b64 exec, -1")
    kmore(N0 - 2, 99)
    for i in range(3): A(f"s_mov_b32 s{80+i}, {i*8192}")
    A("s_mov_b32 s83, 0")
    A("v_and_b32 v11, 1, v1")
    A("v_cmp_ne_u32 s[70:71], 0, v11")
    A("v_and_b32 v11, 2, v1")
    A("v_cmp_ne_u32 s[72:73], 0, v11")
    A("v_lshrrev_b32 v11, 3, v1")
    A("v_lshlrev_b32 v11, 10, v11")
    A("v_lshl_add_u32 v11, v7, 7, v11")
    A("v_and_b32 v12, 7, v1")
    A(f"v_lshl_add_u32 v{vWO}, v12, 4, v11")
    A("v_lshrrev_b32 v11, 2, v10")
    A("v_lshl_add_u32 v11, v9, 3, v11")
    A(f"v_mul_u32_u24 v11, {SPITCH}, v11")
    A("v_and_b32 v12, 3, v10")
    A("v_lshl_add_u32 v11, v12, 3, v11")
    A(f"v_mul_u32_u24 v12, {32*SPITCH}, v7")
    A("v_add_u32 v11, v11, v12")
    A(f"v_add_u32 v{vSR}, {WSCR}, v11")
    srd(A, V_, 8, 26, 262144)
    A(f"s_mul_i32 s65, s{sP}, {24*1024}")
    A(f"s_sub_u32 s66, {1376*1024}, s65")
    A(f"s_cmp_lt_u32 s{sP}, 58")
    A("s_cselect_b32 s66, s66, 0")
    A("s_cselect_b32 s65, s65, 0")
    srd(A, W2_, 18, 65, "s66")
    A(f"s_lshl_b32 s65, s{sH}, 17")
    srd(A, WO_, 12, 65, 131072)
    srd(A, WS_, 24, None, 0x200000)
    for i in range(4): A(f"s_mov_b32 s{SEL_INS+i}, {0x07060500 | i}")
    A(f"s_mov_b32 s{SEL_G0}, 0x0c0c0400")
    A(f"s_mov_b32 s{SEL_G1}, 0x04000c0c")
    A(f"v_lshlrev_b32 v15, 3, v10")
    A(f"v_mov_b32 v{accA}, 0xff800000")
    A(f"v_mov_b32 v{accA+1}, 0")
    A(f"ds_write_b64 v15, v[{accA}:{accA+1}] offset:{ML}")
    A(f"ds_write_b32 v15, v{accA+1} offset:{CNT}")
    zero(A, accB, 4)
    A("v_lshlrev_b32 v11, 4, v0")
    A(f"ds_write_b128 v11, v[{accB}:{accB+3}] offset:{ZR}")
    A.c("layernorm")
    A(f"s_cmp_ge_u32 s{sW}, 4")
    A("s_cbranch_scc1 L_noln")
    A(f"s_waitcnt vmcnt({len(vm.log) - n_x})")
    F = P + 4; t0 = P + 12; zt = Z
    for i in range(4):
        A(f"v_lshlrev_b32 v{F+2*i}, 16, v{P+i}")
        A(f"v_and_b32 v{F+2*i+1}, 0xffff0000, v{P+i}")
    A(f"v_add_f32 v{t0}, v{F}, v{F+1}")
    for i in range(2, 8): A(f"v_add_f32 v{t0}, v{t0}, v{F+i}")
    wave_reduce(A, t0, "v_add_f32", 65)
    A(f"v_mov_b32 v{t0+1}, s65")
    A(f"v_mul_f32 v{t0+1}, 0x3b000000, v{t0+1}")
    A(f"v_sub_f32 v{t0+2}, v{F}, v{t0+1}")
    A(f"v_mul_f32 v{t0}, v{t0+2}, v{t0+2}")
    for i in range(1, 8):
        A(f"v_sub_f32 v{t0+2}, v{F+i}, v{t0+1}")
        A(f"v_fmac_f32 v{t0}, v{t0+2}, v{t0+2}")
    wave_reduce(A, t0, "v_add_f32", 65)
    A(f"v_mov_b32 v{t0+2}, s65")
    A(f"v_mul_f32 v{t0+2}, 0x3b000000, v{t0+2}")
    bf16r(A, t0 + 1, t0 + 1)
    bf16r(A, t0 + 2, t0 + 2)
    A(f"v_add_f32 v{t0+2}, 0x3727c5ac, v{t0+2}")
    bf16r(A, t0 + 2, t0 + 2)
    A(f"v_sqrt_f32 v{t0+2}, v{t0+2}")
    bf16r(A, t0 + 2, t0 + 2)
    A(f"v_rcp_f32 v{t0+3}, v{t0+2}")
    for i in range(8): A(f"v_sub_f32 v{F+i}, v{F+i}, v{t0+1}")
    for i in range(0, 8, 2): A(f"v_cvt_pk_bf16_f32 v{P+i//2}, v{F+i}, v{F+i+1}")
    for i in range(4):
        A(f"v_lshlrev_b32 v{F+2*i}, 16, v{P+i}")
        A(f"v_and_b32 v{F+2*i+1}, 0xffff0000, v{P+i}")
    for i in range(8): A(f"v_mul_f32 v{zt+i}, v{F+i}, v{t0+3}")
    for i in range(8): A(f"v_fma_f32 v{F+i}, -v{zt+i}, v{t0+2}, v{F+i}")
    for i in range(8): A(f"v_fmac_f32 v{zt+i}, v{F+i}, v{t0+3}")
    for i in range(0, 8, 2): A(f"v_cvt_pk_bf16_f32 v{P+i//2}, v{zt+i}, v{zt+i+1}")
    A("v_lshl_add_u32 v11, v7, 10, v8")
    A(f"ds_write_b128 v11, v[{P}:{P+3}] offset:{XN}")
    A("L_noln:")
    A(f"s_lshl_b32 s65, s{sR}, 6")
    A("v_lshlrev_b32 v13, 3, v7")
    A("v_add_u32 v13, s65, v13")
    A("v_and_b32 v11, 1, v10")
    A("v_lshl_add_u32 v11, v11, 2, v9")
    A("v_add_u32 v11, v11, v13")
    A("v_lshlrev_b32 v11, 1, v11")
    A("v_bfe_u32 v12, v10, 1, 2")
    A("v_lshl_add_u32 v11, v12, 10, v11")
    A("v_lshrrev_b32 v12, 3, v1")
    A("v_add_u32 v12, v12, v13")
    A("v_lshlrev_b32 v12, 1, v12")
    A("v_mov_b32 v13, 0")
    A("s_waitcnt lgkmcnt(0)")
    A("s_barrier")
    stamp("b0")
    A(f"ds_read_u16 v{XL}, v11 offset:{XN}")
    for b in range(4): A(f"ds_read_u16 v{P+b}, v12 offset:{XN + b*1024}")
    L = only_wave(PUBW)
    A(f"global_load_dword v{vEp}, v13, s[22:23] sc1")
    A(f"{L}:")
    L = only_wave(0)
    A("v_and_b32 v11, 1, v10")
    A("v_lshl_add_u32 v11, v11, 2, v9")
    A(f"s_lshl_b32 s65, s{sP}, 3")
    A(f"s_lshl_b32 s66, s{sB}, 9")
    A("s_add_u32 s65, s65, s66")
    A("v_add_u32 v11, s65, v11")
    A("v_lshlrev_b32 v11, 1, v11")
    A(f"buffer_load_ushort v{vX}, v11, s[{X_}:{X_+3}], 0 offen")
    A(f"{L}:")
    n_ep = len(vm.log)
    kmore(N1, 99)
    zero(A, accQ, 32)
    for b in range(4): zero(A, accH[b], 8)
    A("s_waitcnt lgkmcnt(0)")
    A(f"v_lshlrev_b32 v{XH}, 16, v{XL}")
    for b in range(4): A(f"v_lshlrev_b32 v{P+4+b}, 16, v{P+b}")
    vm.wait("wq1")
    for t in range(2):
        for b in range(4): acc8(A, accQ + 8 * b, XL, XH, WQD + 4 * t, f"row_newbcast:{2*b+t}")
    vm.wait("w1")
    for b in range(4):
        for r in range(4):
            A(f"v_dot2c_f32_bf16 v{accH[b]+2*r}, v{P+b}, v{W1D+r}")
            A(f"v_dot2c_f32_bf16 v{accH[b]+2*r+1}, v{P+4+b}, v{W1D+r}")
    kmore(N2, 99)
    for b in range(4): greduce(A, accQ + 8 * b)
    for b in range(4): greduce(A, accH[b])
    for b in range(4):
        for e in range(2): A(f"v_add_f32_dpp v{accH[b]+e}, v{accH[b]+e}, v{accH[b]+e} row_ror:8 {DPPM}")
    A("v_lshlrev_b32 v11, 5, v10")
    A("v_lshl_add_u32 v11, v9, 3, v11")
    A("v_lshl_add_u32 v14, v10, 2, v9")
    A("v_lshlrev_b32 v14, 2, v14")
    A(f"v_mul_u32_u24 v12, {OBP}, v7")
    A("v_add_u32 v14, v14, v12")
    A("v_lshrrev_b32 v12, 3, v1")
    A(f"v_mul_u32_u24 v12, {SPITCH}, v12")
    A("v_and_b32 v13, 7, v1")
    A("v_lshl_add_u32 v12, v13, 4, v12")
    A(f"v_mul_u32_u24 v13, {32*SPITCH}, v7")
    A("v_add_u32 v12, v12, v13")
    A(f"v_add_u32 v{vSW}, {WSCR}, v12")
    A("v_mov_b32 v13, 0")
    A("v_lshl_add_u32 v12, v7, 11, v11")
    for b in range(4): A(f"ds_write_b64 v12, v[{accQ+8*b}:{accQ+8*b+1}] offset:{YP + b*512}")
    A("v_and_b32 v11, 7, v10")
    A("v_lshlrev_b32 v11, 5, v11")
    A("v_lshl_add_u32 v11, v9, 3, v11")
    A("v_lshl_add_u32 v11, v7, 10, v11")
    for b in range(4): A(f"ds_write_b64 v11, v[{accH[b]}:{accH[b]+1}] offset:{HLOC + b*256}")
    kmore(N2B, 99)
    A("s_waitcnt lgkmcnt(0)")
    A("s_barrier")
    stamp("b1")
    n_b1 = len(vm.log)
    kmore(N2C, 99)
    L = only_wave(PUBW)
    A("s_setprio 3")
    A(f"s_waitcnt vmcnt({len(vm.log) - n_ep})")
    A(f"v_readfirstlane_b32 s{sE}, v{vEp}")
    A(f"s_cmp_lg_u32 s{sE}, 0")
    A("s_cbranch_scc1 L_ep_ok")
    A("s_mov_b32 s65, 0")
    A("L_ep_loop:")
    A(f"global_load_dword v{vEp}, v13, s[22:23] sc1")
    A("s_waitcnt vmcnt(0)")
    A(f"v_readfirstlane_b32 s{sE}, v{vEp}")
    A("s_add_u32 s65, s65, 1")
    A(f"s_cmp_ge_u32 s65, {SPIN_CAP}")
    A("s_cbranch_scc1 L_ep_ok")
    A(f"s_cmp_eq_u32 s{sE}, 0")
    A("s_cbranch_scc1 L_ep_loop")
    A("L_ep_ok:")
    A(f"ds_write_b32 v13, v{vEp} offset:{CNT+24}")
    for i in range(2):
        for w in range(8): A(f"ds_read_b128 v[{Z+4*w}:{Z+4*w+3}], v8 offset:{YP + i*1024 + w*2048}")
        if i == 0:
            A("v_lshrrev_b32 v11, 5, v1")
            A("v_lshlrev_b32 v11, 12, v11")
            A("v_and_b32 v12, 31, v1")
            A("v_lshl_add_u32 v11, v12, 4, v11")
            A(f"s_lshl_b32 s65, s{sH}, 14")
            A(f"s_lshl_b32 s66, s{sR}, 9")
            A("s_add_u32 s65, s65, s66")
            A(f"s_add_u32 s65, s65, {WS_Q}")
        A("s_waitcnt lgkmcnt(0)")
        sum8(Z)
        for e in range(4): A(f"v_perm_b32 v{P+4*i+e}, v{Z+e}, v{vEp}, s{SEL_INS+e}")
        if not nostore: A(f"buffer_store_dwordx4 v[{P+4*i}:{P+4*i+3}], v11, s[{WS_}:{WS_+3}], s65 offen offset:0 {STF}" if i == 0 else
          f"buffer_store_dwordx4 v[{P+4*i}:{P+4*i+3}], v11, s[{WS_}:{WS_+3}], s66 offen {STF}")
        if i == 0: A("s_add_u32 s66, s65, 8192")
    for w in range(8): A(f"ds_read_b128 v[{Z+4*w}:{Z+4*w+3}], v8 offset:{HLOC + w*1024}")
    A("v_cmp_le_u32 vcc, 6, v10")
    A("v_cndmask_b32 v11, 0, 1, vcc")
    A("v_mul_u32_u24 v12, 6, v11")
    A("v_sub_u32 v12, v10, v12")
    A("v_lshlrev_b32 v12, 4, v12")
    A("v_lshl_add_u32 v12, v11, 10, v12")
    A("v_lshl_add_u32 v12, v9, 11, v12")
    A(f"s_lshl_b32 s65, s{sH}, 13")
    A(f"s_lshl_b32 s66, s{sR}, 7")
    A("s_add_u32 s65, s65, s66")
    A(f"s_add_u32 s65, s65, {WS_H}")
    A("s_waitcnt lgkmcnt(0)")
    sum8(Z)
    for e in range(4): A(f"v_perm_b32 v{P+8+e}, v{Z+e}, v{vEp}, s{SEL_INS+e}")
    A("s_mov_b32 exec_lo, 0x0fff0fff"); A("s_mov_b32 exec_hi, 0x0fff0fff")
    if not nostore: A(f"buffer_store_dwordx4 v[{P+8}:{P+11}], v12, s[{WS_}:{WS_+3}], s65 offen {STF}")
    A("s_mov_b64 exec, -1")
    A("s_setprio 0")
    A(f"{L}:")
    kmore(N3, 99)
    stamp("q_pub")
    def w2c(): transpose(Wr, 3); done.add("w2t")
    consumers["w22"] = (None, w2c)
    def woc(kc): transpose(woreg(4 * kc), 4); done.add(f"wot{kc}")
    for kc in range(4): consumers[f"wo{4*kc+3}"] = (None, (lambda kc=kc: woc(kc)))
    if skipw: done.add("w2t")
    else:
        for i in range(3): aux.append((f"w2{i}", (lambda i=i: w2(i)), None))
    if not skipwo:
        for t in range(NWZ): aux.append((f"wo{t}", (lambda t=t: wo(t)), None))
        for t in range(NWZ, 16): aux.append((f"wo{t}", (lambda t=t: wo(t)), (lambda: "ffn" in done)))
    GQD = accA
    kmore(GQ - kn[0])
    A(f"s_lshl_b32 s65, s{sH}, 2")
    A(f"s_add_u32 s65, s65, s{sB}")
    A("s_lshl_b32 s26, s65, 12")
    A(f"s_add_u32 s26, s26, {WS_Q}")
    A("s_lshl_b32 s87, s65, 1")
    A(f"s_add_u32 s87, s87, s{sS}")
    A("s_lshl_b32 s87, s87, 10")
    A(f"s_add_u32 s87, s87, {WS_H}")
    def gq_loads(fl="sc1"):
        for i in range(4): A(f"buffer_load_dwordx4 v[{GQD+4*i}:{GQD+4*i+3}], v8, s[{WS_}:{WS_+3}], s26 offen offset:{i*1024} {fl}")
    def gh_load(fl="sc1"): A(f"buffer_load_dwordx4 v[{GQD}:{GQD+3}], v8, s[{WS_}:{WS_+3}], s87 offen {fl}")
    L = only_wave(GQWV); gq_loads(GLF); A(f"{L}:")
    L = only_wave(GHWV); gh_load(GLF); A(f"{L}:")
    n_g = len(vm.log)
    kmore(GQW)
    nafter = len(vm.log) - n_g
    L = only_wave(GQWV)
    get_epoch("e1")
    A(f"s_waitcnt vmcnt({nafter})")
    def gqcheck():
        for i in range(4): tagcheck(GQD + 4 * i, P + 2 * i)
        for i in range(4): A(f"v_xor_b32 v{P+2*i}, v{P+2*i}, v{vEp}")
        A(f"v_or3_b32 v{P}, v{P}, v{P+2}, v{P+4}")
        A(f"v_or_b32 v{P}, v{P}, v{P+6}")
        A(f"v_cmp_ne_u32 s[90:91], 0, v{P}")
    gqcheck()
    A("s_cmp_eq_u64 s[90:91], 0")
    A("s_cbranch_scc1 L_gq_ok")
    if nostore: A("s_branch L_gq_ok")
    A("s_mov_b32 s65, 0")
    A("L_gq_loop:")
    gq_loads()
    A("s_waitcnt vmcnt(0)")
    gqcheck()
    A("s_add_u32 s65, s65, 1")
    A(f"s_cmp_ge_u32 s65, {SPIN_CAP}")
    A("s_cbranch_scc1 L_gq_ok")
    A("s_cmp_lg_u64 s[90:91], 0")
    A("s_cbranch_scc1 L_gq_loop")
    A("L_gq_ok:")
    for (a, b) in ((0, 1), (2, 3), (0, 2)):
        for e in (0, 2):
            A(f"v_pk_add_f32 v[{GQD+4*a+e}:{GQD+4*a+e+1}], v[{GQD+4*a+e}:{GQD+4*a+e+1}], v[{GQD+4*b+e}:{GQD+4*b+e+1}]")
    A(f"v_permlane32_swap_b32 v{GQD}, v{GQD+2}")
    A(f"v_permlane32_swap_b32 v{GQD+1}, v{GQD+3}")
    A(f"v_add_f32 v{GQD}, v{GQD}, v{GQD+2}")
    A(f"v_add_f32 v{GQD+1}, v{GQD+1}, v{GQD+3}")
    A(f"v_cvt_pk_bf16_f32 v{GQD}, v{GQD}, v{GQD+1}")
    A("v_and_b32 v11, 31, v1")
    A("v_lshlrev_b32 v11, 1, v11")
    A("v_lshrrev_b32 v12, 5, v1")
    A("v_add_u32 v11, v11, v12")
    A("v_lshlrev_b32 v11, 2, v11")
    A(f"ds_write_b32 v11, v{GQD} offset:{QS}")
    lds_flag(CNT + 16, GQD + 1)
    A(f"{L}:")
    stamp("gq_done")
    L = only_wave(GHWV)
    get_epoch("e2")
    A(f"s_waitcnt vmcnt({nafter})")
    A("s_mov_b32 s68, 0x3f3f3f3f"); A("s_mov_b32 s69, 0x3f3f3f3f")
    def ghcheck():
        tagcheck(GQD, P)
        A(f"v_cmp_ne_u32 s[90:91], v{P}, v{vEp}")
        A("s_and_b64 s[90:91], s[90:91], s[68:69]")
    ghcheck()
    A("s_cbranch_scc0 L_gh_ok")
    if nostore: A("s_branch L_gh_ok")
    A("s_mov_b32 s65, 0")
    A("L_gh_loop:")
    gh_load()
    A("s_waitcnt vmcnt(0)")
    ghcheck()
    A("s_cbranch_scc0 L_gh_ok")
    A("s_add_u32 s65, s65, 1")
    A(f"s_cmp_lt_u32 s65, {SPIN_CAP}")
    A("s_cbranch_scc1 L_gh_loop")
    A("L_gh_ok:")
    A(f"v_permlane32_swap_b32 v{GQD}, v{GQD+2}")
    A(f"v_permlane32_swap_b32 v{GQD+1}, v{GQD+3}")
    A(f"v_add_f32 v{GQD}, v{GQD}, v{GQD+2}")
    A(f"v_add_f32 v{GQD+1}, v{GQD+1}, v{GQD+3}")
    A(f"v_permlane16_swap_b32 v{GQD}, v{GQD+1}")
    A(f"v_add_f32 v{GQD}, v{GQD}, v{GQD+1}")
    A(f"v_add_f32_dpp v{GQD}, v{GQD}, v{GQD} row_ror:8 {DPPM}")
    bf16r(A, GQD, GQD)
    A(f"v_mul_f32 v{GQD+1}, 0xbfb8aa3b, v{GQD}")
    A(f"v_exp_f32 v{GQD+1}, v{GQD+1}")
    A(f"v_add_f32 v{GQD+1}, 1.0, v{GQD+1}")
    A(f"v_rcp_f32 v{GQD+1}, v{GQD+1}")
    A(f"v_mul_f32 v{GQD}, v{GQD}, v{GQD+1}")
    A(f"v_cvt_pk_bf16_f32 v{GQD}, v{GQD}, v{GQD}")
    A("v_and_b32 v11, 7, v10")
    A("v_lshl_add_u32 v11, v11, 2, v9")
    A("v_lshlrev_b32 v11, 1, v11")
    A("s_mov_b32 exec_lo, 0x003f003f"); A("s_mov_b32 exec_hi, 0x003f003f")
    A(f"ds_write_b16 v11, v{GQD} offset:{HB + 8*HBP}")
    A("s_mov_b64 exec, -1")
    lds_flag(CNT + 8, GQD + 1)
    A(f"{L}:")
    kmore(32 - kn[0])
    stamp("k31_iss")
    spin_lds(CNT + 16, 0 if (nosvc or nogather) else 1, "q")
    A("v_lshlrev_b32 v11, 4, v10")
    A(f"ds_read_b128 v[{Q}:{Q+3}], v11 offset:{QS}")
    A("v_mov_b32 v12, 0")
    A(f"ds_read_b32 v{vEp}, v12 offset:{CNT+24}")
    A("s_waitcnt lgkmcnt(0)")
    A(f"v_readfirstlane_b32 s{sE}, v{vEp}")
    stamp("q_ready")
    A.c("K phase")
    ready.add("q")
    run_consumers()
    while any(f"k{t}" in pending for t in range(16)):
        drain_to([n for n in pending if n.startswith("k")][0])
    treduce(A, P, None, R0)
    ready.add("q2")
    vn = [0]
    def vmore(w):
        viss(vn[0], w); vn[0] += 1
        auxstep(RV, w)
    while any(n.startswith("k") for n in pending):
        run_consumers()
        if not any(n.startswith("k") for n in pending): break
        if vn[0] < 16: vmore(WV)
        else: drain_to([n for n in pending if n.startswith("k")][0])
    treduce(A, P, None, R1)
    stamp("k_done")
    while vn[0] < 32 and vm.outstanding() < WV: vmore(WV)
    A(f"v_cvt_pk_bf16_f32 v{P}, v{R0}, v{R1}")
    A(f"v_lshlrev_b32 v{R0}, 16, v{P}")
    A(f"v_and_b32 v{R1}, 0xffff0000, v{P}")
    A(f"v_mul_f32 v{R0}, 0x3db504f3, v{R0}")
    A(f"v_mul_f32 v{R1}, 0x3db504f3, v{R1}")
    A(f"v_cvt_pk_bf16_f32 v{P}, v{R0}, v{R1}")
    A(f"v_lshlrev_b32 v{R0}, 16, v{P}")
    A(f"v_and_b32 v{R1}, 0xffff0000, v{P}")
    A(f"v_max_f32 v{P}, v{R0}, v{R1}")
    wave_reduce(A, P, "v_max_f32", 65)
    A(f"v_subrev_f32 v{R0}, s65, v{R0}")
    A(f"v_subrev_f32 v{R1}, s65, v{R1}")
    A(f"v_mul_f32 v{R0}, 0x3fb8aa3b, v{R0}")
    A(f"v_mul_f32 v{R1}, 0x3fb8aa3b, v{R1}")
    A(f"v_exp_f32 v{R0}, v{R0}")
    A(f"v_exp_f32 v{R1}, v{R1}")
    A(f"v_cvt_pk_bf16_f32 v{P}, v{R0}, v{R1}")
    A(f"v_and_b32 v{PL0}, 0xffff, v{P}")
    A(f"v_lshlrev_b32 v{PH0}, 16, v{P}")
    A(f"v_lshrrev_b32 v{PL1}, 16, v{P}")
    A(f"v_and_b32 v{PH1}, 0xffff0000, v{P}")
    A(f"v_add_f32 v{P+1}, v{R0}, v{R1}")
    wave_reduce(A, P + 1, "v_add_f32", 66)
    A(f"v_mov_b32 v{P+2}, s65")
    A(f"v_mov_b32 v{P+3}, s66")
    A(f"v_lshlrev_b32 v11, 3, v7")
    A(f"ds_write_b64 v11, v[{P+2}:{P+3}] offset:{ML}")
    lds_flag(CNT, P + 4)
    zero(A, accA, 8)
    spin_lds(CNT + 8, 0 if (nosvc or nogather) else 1, "h")
    A(f"v_mul_u32_u24 v12, {HBP}, v10")
    A("v_lshl_add_u32 v12, v9, 4, v12")
    A(f"ds_read_b128 v[{P}:{P+3}], v12 offset:{HB}")
    if "w2t" not in done: drain_to("w22")
    assert "w2t" in done
    A("s_waitcnt lgkmcnt(0)")
    for nt in range(4): A(f"v_mfma_f32_16x16x32_bf16 v[{D+4*nt}:{D+4*nt+3}], v[{P}:{P+3}], v[{Wr+4*nt}:{Wr+4*nt+3}], 0")
    done.add("ffn")
    ready.add("p")
    stamp("p_done")
    run_consumers()
    A.c("V phase")
    A(f"s_lshl_b32 s67, s{sB}, 6")
    A(f"s_add_u32 s67, s67, s{sP}")
    def ml_publish():
        if noml: return
        L = only_wave(0)
        spin_lds(CNT, 8, "ml")
        A("v_and_b32 v12, 7, v1")
        A("v_lshlrev_b32 v12, 3, v12")
        A(f"ds_read_b64 v[{P+6}:{P+7}], v12 offset:{ML}")
        A("s_waitcnt lgkmcnt(0)")
        A(f"v_mov_b32 v{P+8}, v{P+6}")
        for d in ("quad_perm:[1,0,3,2]", "quad_perm:[2,3,0,1]", "row_half_mirror"):
            A(f"v_max_f32_dpp v{P+8}, v{P+8}, v{P+8} {d} {DPPM}")
        A(f"v_sub_f32 v{P+6}, v{P+6}, v{P+8}")
        A(f"v_mul_f32 v{P+6}, 0x3fb8aa3b, v{P+6}")
        A(f"v_exp_f32 v{P+6}, v{P+6}")
        A(f"v_mul_f32 v{P+9}, v{P+7}, v{P+6}")
        for d in ("quad_perm:[1,0,3,2]", "quad_perm:[2,3,0,1]", "row_half_mirror"):
            A(f"v_add_f32_dpp v{P+9}, v{P+9}, v{P+9} {d} {DPPM}")
        A(f"v_mov_b32 v{P+10}, s{sE}")
        A(f"v_not_b32 v{P+11}, v{P+10}")
        A("s_lshl_b32 s65, s67, 4")
        A(f"s_add_u32 s65, s65, {WS_ML}")
        A("s_mov_b64 exec, 1")
        A(f"buffer_store_dwordx4 v[{P+8}:{P+11}], v11, s[{WS_}:{WS_+3}], s65 offen {STF}")
        A("s_mov_b64 exec, -1")
        A(f"{L}:")
    def pm_load():
        A("s_xor_b32 s65, s67, 1")
        A("s_lshl_b32 s65, s65, 4")
        A(f"s_add_u32 s26, s65, {WS_ML}")
        A("v_mov_b32 v11, 0")
        L = only_wave(0)
        A(f"buffer_load_dwordx4 v[{P+12}:{P+15}], v11, s[{WS_}:{WS_+3}], s26 offen sc1")
        A(f"{L}:")
    published = [False]; pmdone = [False]
    while vn[0] < 32:
        if vn[0] >= VML and not published[0]:
            ml_publish(); published[0] = True
        if vn[0] >= PMAT and not pmdone[0]:
            pm_load(); pmdone[0] = True; n_pm = len(vm.log)
        run_consumers()
        vmore(WV)
    if not published[0]: ml_publish()
    while aux:
        name, fn, cond = aux.pop(0)
        assert cond is None or cond()
        issue(fn, name, WV)
    if not pmdone[0]:
        pm_load(); n_pm = len(vm.log)
    while any(n.startswith(("v", "wo")) and n in consumers for n in pending):
        drain_to([n for n in pending if n.startswith(("v", "wo")) and n in consumers][0])
    stamp("v_done")
    if notail:
        A("s_waitcnt vmcnt(0)")
        A("s_branch L_main_end")
    A.c("tail")
    greduce(A, accA)
    A(f"v_cvt_pk_bf16_f32 v{accA}, v{accA}, v{accA+1}")
    A(f"ds_write_b32 v14, v{accA} offset:{OB}")
    A(f"v_mul_u32_u24 v12, {OBP}, v10")
    A("v_lshl_add_u32 v12, v9, 4, v12")
    L = only_wave(0)
    A(f"s_waitcnt vmcnt({min(len(vm.log) - n_pm, 63)})")
    A(f"v_readfirstlane_b32 s65, v{P+14}")
    A(f"s_cmp_eq_u32 s65, s{sE}")
    A("s_cbranch_scc1 L_pm_ok")
    A("s_mov_b32 s66, 0")
    A("L_pm_loop:")
    A(f"buffer_load_dwordx4 v[{P+12}:{P+15}], v11, s[{WS_}:{WS_+3}], s26 offen sc1")
    A("s_waitcnt vmcnt(0)")
    A(f"v_readfirstlane_b32 s65, v{P+14}")
    A("s_add_u32 s66, s66, 1")
    A(f"s_cmp_ge_u32 s66, {SPIN_CAP}")
    A("s_cbranch_scc1 L_pm_ok")
    A(f"s_cmp_lg_u32 s65, s{sE}")
    A("s_cbranch_scc1 L_pm_loop")
    A("L_pm_ok:")
    A(f"ds_write_b64 v11, v[{P+12}:{P+13}] offset:{ML+64}")
    A(f"{L}:")
    A("s_waitcnt lgkmcnt(0)")
    A("s_barrier")
    stamp("b3")
    AF = TLO
    A(f"ds_read_b64 v[{P+8}:{P+9}], v15 offset:{ML}")
    for kc in range(4): A(f"ds_read_b128 v[{AF+4*kc}:{AF+4*kc+3}], v12 offset:{OB + kc*64}")
    A("v_lshrrev_b32 v11, 2, v1")
    A("v_lshl_add_u32 v11, v7, 4, v11")
    A("v_lshrrev_b32 v14, 1, v11")
    A("v_lshlrev_b32 v14, 11, v14")
    A("v_and_b32 v11, 1, v11")
    A("v_lshl_add_u32 v14, v11, 4, v14")
    A(f"s_lshl_b32 s65, s{sB}, 17")
    A(f"s_lshl_b32 s66, s{sP}, 5")
    A("s_add_u32 s65, s65, s66")
    A("s_waitcnt lgkmcnt(0)")
    sc = []
    sc.append(f"v_mov_b32 v{P+10}, v{P+8}")
    for d in ("quad_perm:[1,0,3,2]", "quad_perm:[2,3,0,1]", "row_half_mirror", "row_mirror"):
        sc.append(f"v_max_f32_dpp v{P+10}, v{P+10}, v{P+10} {d} {DPPM}")
    sc.append(f"v_sub_f32 v{P+8}, v{P+8}, v{P+10}")
    sc.append(f"v_mul_f32 v{P+8}, 0x3fb8aa3b, v{P+8}")
    sc.append(f"v_exp_f32 v{P+8}, v{P+8}")
    sc.append(f"v_mul_f32 v{P+9}, v{P+9}, v{P+8}")
    for d in ("quad_perm:[1,0,3,2]", "quad_perm:[2,3,0,1]", "row_half_mirror", "row_mirror"):
        sc.append(f"v_add_f32_dpp v{P+9}, v{P+9}, v{P+9} {d} {DPPM}")
    sc.append(f"v_rcp_f32 v{P+9}, v{P+9}")
    sc.append(f"v_cmp_gt_u32 s[70:71], 8, v10")
    sc.append(f"v_cmp_eq_u32 s[72:73], 8, v10")
    sc.append(f"v_mul_f32 v{P+8}, v{P+8}, v{P+9}")
    sc.append(f"v_cndmask_b32 v{P+8}, 0, v{P+8}, s[70:71]")
    sc.append(f"v_cndmask_b32 v{P+8}, v{P+8}, 1.0, s[72:73]")
    sc.append(f"v_lshlrev_b32 v11, 2, v10")
    sc.append(f"ds_write_b32 v11, v{P+8} offset:{SC}")
    sc.append(f"v_lshlrev_b32 v11, 4, v9")
    sc.append(f"ds_read_b128 v[{P}:{P+3}], v11 offset:{SC}")
    mf = []
    for kc in range(4):
        for nt in range(4):
            mf.append(f"v_mfma_f32_16x16x32_bf16 v[{D+4*nt}:{D+4*nt+3}], v[{AF+4*kc}:{AF+4*kc+3}], v[{woreg(4*kc)+4*nt}:{woreg(4*kc)+4*nt+3}], v[{D+4*nt}:{D+4*nt+3}]")
    k = 0
    for m in mf:
        A(m)
        for _ in range(2):
            if k < len(sc): A(sc[k]); k += 1
    while k < len(sc): A(sc[k]); k += 1
    A("s_waitcnt lgkmcnt(0)")
    Y = P + 4
    for nt in range(4):
        A(f"v_mul_f32 v{Y+nt}, v{P}, v{D+4*nt}")
        for r in range(1, 4): A(f"v_fmac_f32 v{Y+nt}, v{P+r}, v{D+4*nt+r}")
    A(f"v_permlane32_swap_b32 v{Y}, v{Y+2}")
    A(f"v_permlane32_swap_b32 v{Y+1}, v{Y+3}")
    A(f"v_add_f32 v{Y}, v{Y}, v{Y+2}")
    A(f"v_add_f32 v{Y+1}, v{Y+1}, v{Y+3}")
    A(f"v_permlane16_swap_b32 v{Y}, v{Y+1}")
    A(f"v_add_f32 v{Y}, v{Y}, v{Y+1}")
    for e in range(1, 4): A(f"v_mov_b32_dpp v{Y+e}, v{Y} quad_perm:[{e},{e},{e},{e}] {DPPM}")
    for e in range(4): A(f"v_perm_b32 v{P+8+e}, v{Y+e}, v{vEp}, s{SEL_INS+e}")
    A("s_mov_b32 exec_lo, 0x11111111"); A("s_mov_b32 exec_hi, 0x11111111")
    A(f"buffer_store_dwordx4 v[{P+8}:{P+11}], v14, s[{WS_}:{WS_+3}], s65 offen {STF}")
    A("s_mov_b64 exec, -1")
    stamp("y_sent")
    if nofin: A("s_branch L_main_end")
    A(f"s_cmp_lg_u32 s{sW}, 0")
    A("s_cbranch_scc1 L_fin_skip")
    A("s_lshl_b32 s65, s67, 11")
    A("s_mov_b64 s[66:67], -1")
    A("s_mov_b64 s[68:69], -1")
    A("s_mov_b32 s26, 0")
    FA, FB = P, P + 4
    A("L_fin_loop:")
    A("s_mov_b64 exec, s[66:67]")
    A(f"buffer_load_dwordx4 v[{FA}:{FA+3}], v8, s[{WS_}:{WS_+3}], s65 offen sc1")
    A("s_mov_b64 exec, s[68:69]")
    A(f"buffer_load_dwordx4 v[{FB}:{FB+3}], v8, s[{WS_}:{WS_+3}], s65 offen offset:1024 sc1")
    A("s_mov_b64 exec, -1")
    A("s_waitcnt vmcnt(0)")
    tagcheck(FA, P + 8); tagcheck(FB, P + 10)
    A(f"v_cmp_ne_u32 s[66:67], v{P+8}, v{vEp}")
    A(f"v_cmp_ne_u32 s[68:69], v{P+10}, v{vEp}")
    A("s_or_b64 s[90:91], s[66:67], s[68:69]")
    A("s_cbranch_scc0 L_fin_done")
    if sleep: A(f"s_sleep {sleep}")
    A("s_add_u32 s26, s26, 1")
    A(f"s_cmp_lt_u32 s26, {SPIN_CAP}")
    A("s_cbranch_scc1 L_fin_loop")
    A("L_fin_done:")
    stamp("polled")
    for e in range(4): A(f"v_add_f32 v{FA+e}, v{FA+e}, v{FB+e}")
    A(f"v_permlane32_swap_b32 v{FA}, v{FA+2}")
    A(f"v_permlane32_swap_b32 v{FA+1}, v{FA+3}")
    A(f"v_add_f32 v{FA}, v{FA}, v{FA+2}")
    A(f"v_add_f32 v{FA+1}, v{FA+1}, v{FA+3}")
    A(f"v_permlane16_swap_b32 v{FA}, v{FA+1}")
    A(f"v_add_f32 v{FA}, v{FA}, v{FA+1}")
    for d in ("quad_perm:[2,3,0,1]", "row_ror:4", "row_ror:8"):
        A(f"v_add_f32_dpp v{FA}, v{FA}, v{FA} {d} {DPPM}")
    A(f"v_lshlrev_b32 v{vX}, 16, v{vX}")
    A(f"v_add_f32 v{FA}, v{FA}, v{vX}")
    A(f"v_cvt_pk_bf16_f32 v{FA}, v{FA}, v{FA}")
    A("v_and_b32 v11, 1, v10")
    A("v_lshl_add_u32 v11, v11, 2, v9")
    A(f"s_lshl_b32 s65, s{sP}, 3")
    A(f"s_lshl_b32 s66, s{sB}, 9")
    A("s_add_u32 s65, s65, s66")
    A("v_add_u32 v11, s65, v11")
    A("v_lshlrev_b32 v11, 1, v11")
    A("s_mov_b32 s66, 0x00030003")
    A("s_mov_b32 exec_lo, s66")
    A("s_mov_b32 exec_hi, s66")
    A(f"global_store_short v11, v{FA}, s[20:21] {OUTF}")
    A("s_mov_b64 exec, -1")
    A("L_fin_skip:")
    if stamps:
        stamp("end")
        A("s_waitcnt lgkmcnt(0)")
        for i in range(len(STAMP_NAMES)): A(f"v_writelane_b32 v255, s{STREGS[i]}, {i}")
        A(f"s_lshl_b32 s68, s{sW}, 16")
        A("s_lshl_b32 s69, s2, 8")
        A("s_add_u32 s68, s68, s69")
        A(f"s_add_u32 s68, s68, {WS_ST}")
        A("v_lshlrev_b32 v12, 2, v1")
        A(f"buffer_store_dword v255, v12, s[{WS_}:{WS_+3}], s68 offen")
    A("L_main_end:")
    A("s_endpgm")
    return A

def build(**kw):
    m = gen_main(**kw)
    s = HEADER
    s += f"; @launch grid=(256,1,1) block=(512,1,1) lds={LDS_TOTAL}\n"
    s += '.amdgcn_target "amdgcn-amd-amdhsa--gfx950"\n.text\n'
    nm = NAME + "_kernel"
    s += f".globl {nm}\n.p2align 8\n.type {nm},@function\n{nm}:\n" + m.text()
    s += '.section .rodata,"a"\n.p2align 6\n'
    s += kd(nm, 256, 102)
    return s

if __name__ == "__main__":
    out = sys.argv[1] if len(sys.argv) > 1 else f"cdna_kernels/{NAME}.s"
    kw = {}
    for a in sys.argv[2:]:
        if "=" in a:
            k, v = a.split("=", 1)
            kw[k] = int(v) if v.lstrip("-").isdigit() else v
    if "stamps" in sys.argv: kw["stamps"] = True
    open(out, "w").write(build(**kw))
    if STAMP_NAMES: open(out + ".stamps", "w").write(",".join(STAMP_NAMES))
    print("written", out)
```

```python
import sys
from asmlib import Asm
from gen1 import (NAME, HEADER, VM, DPPM, acc8, zero, greduce, wave_reduce, treduce, bf16r, srd, kd)
STAMP_NAMES = []

XN = 0
QS = 4096
ML = QS + 256
CNT = ML + 128
ZR = CNT + 128
OBP = 272; HBP = 80
OB = ZR
HB = OB + 16 * OBP
SC = HB + 16 * HBP
HLOC = ZR + 8192
YP = HLOC + 8192
SPITCH = 144
WSCR = YP + 16384
LDS_TOTAL = WSCR + 8 * 32 * SPITCH

WS_Y = 0
WS_ML = 0x80000
WS_Q = 0x90000
WS_H = 0x110000
WS_ST = 0x180000
SPIN_CAP = 200000

def gen_main(LD="nt", WLD="nt", stamps=False, W=6, WV=None, N0=4, N1=4, N2=2, N2B=1, N3=3, GQ=20, GQW=6, VML=16,
             RK=3, RV=2, NWZ=12, STF="sc1", sleep=0, notail=0, skipwo=0, PUBW=3, GQWV=1, GHWV=2, HBMWIN=0, N2C=0, nostore=0, nogather=0, noml=0, nopubc=0, DET=1, PMAT=99, nofin=0, GLF="sc1", skipw=0, nosvc=0, OUTF="", FPOLL=1):
    A = Asm(); vm = VM(A)
    accA, accB, Q, XL, XH, HL, HH = 16, 24, 32, 36, 37, 38, 39
    R0, R1, PL0, PH0, PL1, PH1 = 40, 41, 42, 43, 44, 45
    vX, vEp = 46, 47
    P, Wr, TLO, THI, Z = 48, 64, 80, 144, 208
    accQ, WQD, W1D = Z, Z + 32, Z + 40
    accH = [Wr, Wr + 8, accA, accB]
    vKV, vWQ, vW1, vWO = 2, 3, 4, 6
    vSW, vSR = 4, 5
    D = 24
    K_, V_, WQ_, W1_, W2_, WO_, X_, WS_ = 28, 32, 36, 40, 44, 48, 52, 56
    sB, sH, sS, sP, sW, sE, sR = 60, 61, 62, 63, 64, 27, 3
    SEL_INS, SEL_G0, SEL_G1 = 92, 96, 97
    STREGS = [74, 76, 78, 88, 98, 100, 14, 4, 6, 8, 10, 12, 16, 18]
    WV = W if WV is None else WV
    if nosvc: PUBW = GQWV = GHWV = 99
    if nogather: GQWV = GHWV = 99
    def stamp(label=""):
        if not stamps: return
        r = STREGS[len(STAMP_NAMES)]
        A(f"s_memrealtime s[{r}:{r+1}]")
        STAMP_NAMES.append(label)
    def lg(n): A(f"s_waitcnt lgkmcnt({0 if stamps else n})")
    lbl = [0]
    def only_wave(w):
        lbl[0] += 1; L = f"L_skip{lbl[0]}"
        A(f"s_cmp_lg_u32 s{sW}, {w}"); A(f"s_cbranch_scc1 {L}")
        return L
    def spin_lds(off, target, name):
        A("v_mov_b32 v11, 0"); A("s_mov_b32 s65, 0")
        A(f"L_{name}_loop:")
        A(f"ds_read_b32 v12, v11 offset:{off}")
        A("s_waitcnt lgkmcnt(0)")
        A("v_readfirstlane_b32 s66, v12")
        A("s_add_u32 s65, s65, 1")
        A(f"s_cmp_ge_u32 s65, {SPIN_CAP}")
        A(f"s_cbranch_scc1 L_{name}_ok")
        A(f"s_cmp_lg_u32 s66, {target}")
        A(f"s_cbranch_scc1 L_{name}_loop")
        A(f"L_{name}_ok:")
    def get_epoch(name):
        A("v_mov_b32 v11, 0"); A("s_mov_b32 s65, 0")
        A(f"L_{name}_loop:")
        A(f"ds_read_b32 v{vEp}, v11 offset:{CNT+24}")
        A("s_waitcnt lgkmcnt(0)")
        A(f"v_readfirstlane_b32 s{sE}, v{vEp}")
        A("s_add_u32 s65, s65, 1")
        A(f"s_cmp_ge_u32 s65, {SPIN_CAP}")
        A(f"s_cbranch_scc1 L_{name}_ok")
        A(f"s_cmp_eq_u32 s{sE}, 0")
        A(f"s_cbranch_scc1 L_{name}_loop")
        A(f"L_{name}_ok:")
    def lds_flag(off, tmp, add=True):
        A("v_mov_b32 v12, 0"); A(f"v_mov_b32 v{tmp}, 1")
        A("s_mov_b64 exec, 1")
        A(f"ds_add_u32 v12, v{tmp} offset:{off}")
        A("s_mov_b64 exec, -1")
    def tagcheck(f, t):
        A(f"v_perm_b32 v{t}, v{f+1}, v{f}, s{SEL_G0}")
        A(f"v_perm_b32 v{t+1}, v{f+3}, v{f+2}, s{SEL_G1}")
        A(f"v_or_b32 v{t}, v{t}, v{t+1}")
    def untag(base, n, tmp=12):
        if not DET: return
        A(f"v_mov_b32 v{tmp}, 0x80")
        for i in range(n): A(f"v_perm_b32 v{base+i}, v{base+i}, v{tmp}, s{SEL_INS}")
    def sum8(base):
        for (a, b) in ((0, 1), (2, 3), (4, 5), (6, 7), (0, 2), (4, 6), (0, 4)):
            for e in (0, 2):
                A(f"v_pk_add_f32 v[{base+4*a+e}:{base+4*a+e+1}], v[{base+4*a+e}:{base+4*a+e+1}], v[{base+4*b+e}:{base+4*b+e+1}]")

    A("s_cmp_ge_u32 s2, 256")
    A("s_cbranch_scc1 L_main_end")
    stamp("entry")
    A("s_load_dwordx16 s[4:19], s[0:1], 0")
    A("s_load_dwordx4 s[20:23], s[0:1], 64")
    A("s_load_dwordx2 s[24:25], s[0:1], 80")
    A("s_and_b32 s65, s2, 7")
    A("s_lshr_b32 s66, s2, 3")
    A("s_lshr_b32 s67, s66, 3")
    A("s_lshl_b32 s68, s65, 2")
    A(f"s_add_u32 s{sH}, s67, s68")
    A(f"s_and_b32 s{sR}, s66, 7")
    A(f"s_lshr_b32 s{sB}, s{sR}, 1")
    A(f"s_and_b32 s{sS}, s66, 1")
    A(f"s_lshl_b32 s{sP}, s{sH}, 1")
    A(f"s_add_u32 s{sP}, s{sP}, s{sS}")
    A(f"s_lshl_b32 s65, s{sB}, 5")
    A(f"s_add_u32 s65, s65, s{sH}")
    A("s_lshl_b32 s65, s65, 21")
    A(f"s_lshl_b32 s66, s{sS}, 18")
    A("s_add_u32 s65, s65, s66")
    A(f"s_add_u32 s26, s65, {6144*256}")
    A("s_mov_b32 s84, 0")
    A("s_mov_b32 s85, 0")
    A("v_and_b32 v1, 63, v0")
    A("v_lshrrev_b32 v7, 6, v0")
    A("v_lshlrev_b32 v8, 4, v1")
    A(f"v_readfirstlane_b32 s{sW}, v7")
    A(f"v_lshl_add_u32 v{vKV}, v7, 10, v8")
    A("v_lshrrev_b32 v9, 4, v1")
    A("v_and_b32 v10, 15, v1")
    A(f"s_lshl_b32 s65, s{sR}, 6")
    A("v_lshlrev_b32 v13, 3, v7")
    A("v_add_u32 v13, s65, v13")
    A("v_add_u32 v11, v13, v9")
    A("v_lshlrev_b32 v11, 13, v11")
    A(f"v_lshl_add_u32 v{vWQ}, v10, 4, v11")
    A("v_add_u32 v11, v13, v9")
    A("v_mul_u32_u24 v11, 2752, v11")
    A(f"v_lshl_add_u32 v{vW1}, v10, 4, v11")
    A("v_mov_b32 v13, 0")
    A("s_waitcnt lgkmcnt(0)")
    srd(A, K_, 6, 26, 262144)

    def ld(name, reg, vaddr, srd_, soff, off, fl):
        o = f" offset:{off}" if off else ""
        vm.issue(name, f"buffer_load_dwordx4 v[{reg}:{reg+3}], v{vaddr}, s[{srd_}:{srd_+3}], {soff} offen{o} {fl}")
    def kv(kind, t):
        reg = (TLO + 4 * t) if t < 16 else (THI + 4 * (t - 16))
        so = 84 if kind == "k" else 85
        ld(f"{kind}{t}", reg, vKV, K_ if kind == "k" else V_, f"s{so}", 0, LD)
        if t < 31: A(f"s_add_u32 s{so}, s{so}, 8192")
    def w2(i): ld(f"w2{i}", Wr + 4 * i, vWO, W2_, f"s{80+i}", 0, WLD)
    def woreg(t): return (Z + 4 * t) if t < NWZ else (Wr + 4 * (t - NWZ))
    def wo(t):
        ld(f"wo{t}", woreg(t), vWO, WO_, "s83", 0, WLD)
        if t < 15: A("s_add_u32 s83, s83, 8192")
    def transpose(base, nraw):
        for i in range(4):
            if i < nraw: A(f"ds_write_b128 v{vSW}, v[{base+4*i}:{base+4*i+3}] offset:{i*8*SPITCH}")
            else:
                zero(A, base + 4 * i, 4)
                A(f"ds_write_b128 v{vSW}, v[{base+4*i}:{base+4*i+3}] offset:{i*8*SPITCH}")
        for nt in range(4):
            for half in range(2):
                A(f"ds_read_b64_tr_b16 v[{base+4*nt+2*half}:{base+4*nt+2*half+1}], v{vSR} offset:{half*4*SPITCH + nt*32}")
    consumers = {}; pending = []; ready = set(); done = set()
    def run_consumers():
        for n in list(pending):
            if n in vm.q: continue
            c = consumers.get(n)
            if c is None:
                pending.remove(n); continue
            cond, fn = c
            if cond is None or cond in ready:
                fn(); pending.remove(n)
    def issue(fn, name, w=None):
        w = W if w is None else w
        if HBMWIN and w < 90:
            isaux = not name.startswith(("k", "v"))
            hb_idx = [i for i, n in enumerate(vm.q) if n.startswith(("k", "v")) and not n.startswith("w")]
            if not isaux and len(hb_idx) >= w:
                vm.wait(vm.q[hb_idx[len(hb_idx) - w]]); run_consumers()
        elif vm.outstanding() >= w:
            vm.wait(vm.q[vm.outstanding() - w]); run_consumers()
        fn(); pending.append(name)
    def drain_to(name):
        vm.wait(name); run_consumers()
    def kcons(t):
        reg = (TLO + 4 * t) if t < 16 else (THI + 4 * (t - 16)); p = P + (t % 16)
        A(f"v_dot2_f32_bf16 v{p}, v{reg}, v{Q}, 0")
        for r in range(1, 4): A(f"v_dot2_f32_bf16 v{p}, v{reg+r}, v{Q+r}, v{p}")
    for t in range(32): consumers[f"k{t}"] = ("q" if t < 16 else "q2", (lambda t=t: kcons(t)))
    for t in range(32):
        reg = (TLO + 4 * t) if t < 16 else (THI + 4 * (t - 16))
        consumers[f"v{t}"] = ("p", (lambda t=t, reg=reg: acc8(A, accA, PL0 if t < 16 else PL1, PH0 if t < 16 else PH1, reg, f"row_newbcast:{t%16}")))
    kn = [0]; aux = []; hb = [0]
    def auxstep(R, w):
        hb[0] += 1
        if R and hb[0] % R == 0 and aux:
            name, fn, cond = aux[0]
            if cond is None or cond():
                aux.pop(0); issue(fn, name, w)
    def kmore(n, w=None):
        for _ in range(n):
            if kn[0] < 32:
                t = kn[0]; issue(lambda: kv("k", t), f"k{t}", w); kn[0] += 1
                auxstep(RK, w)
    def viss(t, w): issue(lambda: kv("v", t), f"v{t}", w)

    kmore(2, 99)
    A(f"s_or_b32 s65, s2, s{sW}")
    A("s_cmp_lg_u32 s65, 0")
    A("s_cbranch_scc1 L_noep")
    A("s_memrealtime s[90:91]")
    A("s_waitcnt lgkmcnt(0)")
    A("s_or_b32 s90, s90, 1")
    A("v_mov_b32 v12, s90")
    A("global_store_dword v13, v12, s[22:23] sc0 sc1")
    A("L_noep:")
    srd(A, X_, 4, None, 4096)
    A(f"s_cmp_ge_u32 s{sW}, 4")
    A("s_cbranch_scc1 L_nox")
    A(f"s_lshl_b32 s65, s{sW}, 10")
    A(f"buffer_load_dwordx4 v[{P}:{P+3}], v8, s[{X_}:{X_+3}], s65 offen")
    A("L_nox:")
    n_x = len(vm.log)
    A(f"s_lshl_b32 s65, s{sH}, 8")
    A(f"s_sub_u32 s66, {512*8192}, s65")
    srd(A, WQ_, 10, 65, "s66")
    if not skipw:
        ld("wq0", WQD, vWQ, WQ_, "0", 0, WLD)
        A("s_mov_b32 s65, 32768")
        ld("wq1", WQD + 4, vWQ, WQ_, "s65", 0, WLD)
    A(f"s_mul_i32 s65, s{sH}, 96")
    A(f"s_sub_u32 s66, {512*2752}, s65")
    A(f"s_cmp_lt_u32 s{sH}, 29")
    A("s_cselect_b32 s66, s66, 0")
    A("s_cselect_b32 s65, s65, 0")
    srd(A, W1_, 16, 65, "s66")
    A("s_mov_b32 exec_lo, 0x003f003f"); A("s_mov_b32 exec_hi, 0x003f003f")
    if not skipw:
        ld("w10", W1D, vW1, W1_, "0", 0, WLD)
        A(f"s_mov_b32 s65, {4*2752}")
        ld("w11", W1D + 4, vW1, W1_, "s65", 0, WLD)
    A("s_mov_b64 exec, -1")
    kmore(N0 - 2, 99)
    for i in range(3): A(f"s_mov_b32 s{80+i}, {i*8192}")
    A("s_mov_b32 s83, 0")
    A("v_and_b32 v11, 1, v1")
    A("v_cmp_ne_u32 s[70:71], 0, v11")
    A("v_and_b32 v11, 2, v1")
    A("v_cmp_ne_u32 s[72:73], 0, v11")
    A("v_lshrrev_b32 v11, 3, v1")
    A("v_lshlrev_b32 v11, 10, v11")
    A("v_lshl_add_u32 v11, v7, 7, v11")
    A("v_and_b32 v12, 7, v1")
    A(f"v_lshl_add_u32 v{vWO}, v12, 4, v11")
    A("v_lshrrev_b32 v11, 2, v10")
    A("v_lshl_add_u32 v11, v9, 3, v11")
    A(f"v_mul_u32_u24 v11, {SPITCH}, v11")
    A("v_and_b32 v12, 3, v10")
    A("v_lshl_add_u32 v11, v12, 3, v11")
    A(f"v_mul_u32_u24 v12, {32*SPITCH}, v7")
    A("v_add_u32 v11, v11, v12")
    A(f"v_add_u32 v{vSR}, {WSCR}, v11")
    srd(A, V_, 8, 26, 262144)
    A(f"s_mul_i32 s65, s{sP}, {24*1024}")
    A(f"s_sub_u32 s66, {1376*1024}, s65")
    A(f"s_cmp_lt_u32 s{sP}, 58")
    A("s_cselect_b32 s66, s66, 0")
    A("s_cselect_b32 s65, s65, 0")
    srd(A, W2_, 18, 65, "s66")
    A(f"s_lshl_b32 s65, s{sH}, 17")
    srd(A, WO_, 12, 65, 131072)
    srd(A, WS_, 24, None, 0x200000)
    for i in range(4): A(f"s_mov_b32 s{SEL_INS+i}, {0x07060500 | i}")
    A(f"s_mov_b32 s{SEL_G0}, 0x0c0c0400")
    A(f"s_mov_b32 s{SEL_G1}, 0x04000c0c")
    A(f"v_lshlrev_b32 v15, 3, v10")
    A(f"v_mov_b32 v{accA}, 0xff800000")
    A(f"v_mov_b32 v{accA+1}, 0")
    A(f"ds_write_b64 v15, v[{accA}:{accA+1}] offset:{ML}")
    A(f"ds_write_b32 v15, v{accA+1} offset:{CNT}")
    zero(A, accB, 4)
    A("v_lshlrev_b32 v11, 4, v0")
    A(f"ds_write_b128 v11, v[{accB}:{accB+3}] offset:{ZR}")
    A.c("layernorm")
    A(f"s_cmp_ge_u32 s{sW}, 4")
    A("s_cbranch_scc1 L_noln")
    A(f"s_waitcnt vmcnt({len(vm.log) - n_x})")
    F = P + 4; t0 = P + 12; zt = Z
    for i in range(4):
        A(f"v_lshlrev_b32 v{F+2*i}, 16, v{P+i}")
        A(f"v_and_b32 v{F+2*i+1}, 0xffff0000, v{P+i}")
    A(f"v_add_f32 v{t0}, v{F}, v{F+1}")
    for i in range(2, 8): A(f"v_add_f32 v{t0}, v{t0}, v{F+i}")
    wave_reduce(A, t0, "v_add_f32", 65)
    A(f"v_mov_b32 v{t0+1}, s65")
    A(f"v_mul_f32 v{t0+1}, 0x3b000000, v{t0+1}")
    A(f"v_sub_f32 v{t0+2}, v{F}, v{t0+1}")
    A(f"v_mul_f32 v{t0}, v{t0+2}, v{t0+2}")
    for i in range(1, 8):
        A(f"v_sub_f32 v{t0+2}, v{F+i}, v{t0+1}")
        A(f"v_fmac_f32 v{t0}, v{t0+2}, v{t0+2}")
    wave_reduce(A, t0, "v_add_f32", 65)
    A(f"v_mov_b32 v{t0+2}, s65")
    A(f"v_mul_f32 v{t0+2}, 0x3b000000, v{t0+2}")
    bf16r(A, t0 + 1, t0 + 1)
    bf16r(A, t0 + 2, t0 + 2)
    A(f"v_add_f32 v{t0+2}, 0x3727c5ac, v{t0+2}")
    bf16r(A, t0 + 2, t0 + 2)
    A(f"v_sqrt_f32 v{t0+2}, v{t0+2}")
    bf16r(A, t0 + 2, t0 + 2)
    A(f"v_rcp_f32 v{t0+3}, v{t0+2}")
    for i in range(8): A(f"v_sub_f32 v{F+i}, v{F+i}, v{t0+1}")
    for i in range(0, 8, 2): A(f"v_cvt_pk_bf16_f32 v{P+i//2}, v{F+i}, v{F+i+1}")
    for i in range(4):
        A(f"v_lshlrev_b32 v{F+2*i}, 16, v{P+i}")
        A(f"v_and_b32 v{F+2*i+1}, 0xffff0000, v{P+i}")
    for i in range(8): A(f"v_mul_f32 v{zt+i}, v{F+i}, v{t0+3}")
    for i in range(8): A(f"v_fma_f32 v{F+i}, -v{zt+i}, v{t0+2}, v{F+i}")
    for i in range(8): A(f"v_fmac_f32 v{zt+i}, v{F+i}, v{t0+3}")
    for i in range(0, 8, 2): A(f"v_cvt_pk_bf16_f32 v{P+i//2}, v{zt+i}, v{zt+i+1}")
    A("v_lshl_add_u32 v11, v7, 10, v8")
    A(f"ds_write_b128 v11, v[{P}:{P+3}] offset:{XN}")
    A("L_noln:")
    A(f"s_lshl_b32 s65, s{sR}, 6")
    A("v_lshlrev_b32 v13, 3, v7")
    A("v_add_u32 v13, s65, v13")
    A("v_add_u32 v11, v13, v9")
    A("v_lshlrev_b32 v11, 1, v11")
    A("v_lshrrev_b32 v12, 3, v10")
    A("v_lshl_add_u32 v11, v12, 10, v11")
    MK = Z + 16
    A("v_and_b32 v12, 1, v10")
    A("v_lshlrev_b32 v12, 4, v12")
    A("s_mov_b32 s65, 0xffff")
    A(f"v_lshlrev_b32 v12, v12, s65" if False else f"v_mov_b32 v{MK+4}, 0xffff")
    A(f"v_lshlrev_b32 v12, v12, v{MK+4}")
    A(f"v_bfe_u32 v{MK+4}, v10, 1, 2")
    for wq_ in range(4):
        A(f"v_cmp_eq_u32 vcc, {wq_}, v{MK+4}")
        A(f"v_cndmask_b32 v{MK+wq_}, 0, v12, vcc")
    A("v_mov_b32 v13, 0")
    A("s_waitcnt lgkmcnt(0)")
    A("s_barrier")
    stamp("b0")
    for t in range(2):
        for bp in range(2): A(f"ds_read_u16 v{P+2*t+bp}, v11 offset:{XN + bp*2048 + t*8}")
    L = only_wave(PUBW)
    A(f"global_load_dword v{vEp}, v13, s[22:23] sc1")
    A(f"{L}:")
    L = only_wave(0)
    A("v_and_b32 v11, 1, v10")
    A("v_lshl_add_u32 v11, v11, 2, v9")
    A(f"s_lshl_b32 s65, s{sP}, 3")
    A(f"s_lshl_b32 s66, s{sB}, 9")
    A("s_add_u32 s65, s65, s66")
    A("v_add_u32 v11, s65, v11")
    A("v_lshlrev_b32 v11, 1, v11")
    A(f"buffer_load_ushort v{vX}, v11, s[{X_}:{X_+3}], 0 offen")
    A(f"{L}:")
    n_ep = len(vm.log)
    kmore(N1, 99)
    A("s_waitcnt lgkmcnt(0)")
    AT = Z
    for k in range(4): A(f"v_lshl_or_b32 v{P+k}, v{P+k}, 16, v{P+k}")
    for k in range(4):
        for wq_ in range(4): A(f"v_and_b32 v{AT+4*k+wq_}, v{P+k}, v{MK+wq_}")
    vm.wait("wq1")
    for t in range(2):
        for bp in range(2):
            c = "0" if t == 0 else f"v[{accA+4*bp}:{accA+4*bp+3}]"
            A(f"v_mfma_f32_16x16x32_bf16 v[{accA+4*bp}:{accA+4*bp+3}], v[{AT+4*(2*t+bp)}:{AT+4*(2*t+bp)+3}], v[{WQD+4*t}:{WQD+4*t+3}], {c}")
    vm.wait("w11")
    for t in range(2):
        for bp in range(2):
            c = "0" if t == 0 else f"v[{accB+4*bp}:{accB+4*bp+3}]"
            A(f"v_mfma_f32_16x16x32_bf16 v[{accB+4*bp}:{accB+4*bp+3}], v[{AT+4*(2*t+bp)}:{AT+4*(2*t+bp)+3}], v[{W1D+4*t}:{W1D+4*t+3}], {c}")
    kmore(N2, 99)
    A("v_and_b32 v11, 1, v9")
    A("v_lshlrev_b32 v11, 4, v11")
    A("v_lshl_add_u32 v11, v10, 5, v11")
    A("v_lshrrev_b32 v12, 1, v9")
    A("v_lshl_add_u32 v13, v12, 9, v11")
    A("v_lshl_add_u32 v13, v7, 11, v13")
    A("v_lshl_add_u32 v12, v12, 8, v11")
    A("v_lshl_add_u32 v12, v7, 10, v12")
    for bp in range(2): A(f"ds_write_b128 v13, v[{accA+4*bp}:{accA+4*bp+3}] offset:{YP + bp*1024}")
    A("s_mov_b32 exec_lo, 0x003f003f"); A("s_mov_b32 exec_hi, 0x003f003f")
    for bp in range(2): A(f"ds_write_b128 v12, v[{accB+4*bp}:{accB+4*bp+3}] offset:{HLOC + bp*512}")
    A("s_mov_b64 exec, -1")
    A("v_lshl_add_u32 v14, v10, 2, v9")
    A("v_lshlrev_b32 v14, 2, v14")
    A(f"v_mul_u32_u24 v12, {OBP}, v7")
    A("v_add_u32 v14, v14, v12")
    A("v_lshrrev_b32 v12, 3, v1")
    A(f"v_mul_u32_u24 v12, {SPITCH}, v12")
    A("v_and_b32 v13, 7, v1")
    A("v_lshl_add_u32 v12, v13, 4, v12")
    A(f"v_mul_u32_u24 v13, {32*SPITCH}, v7")
    A("v_add_u32 v12, v12, v13")
    A(f"v_add_u32 v{vSW}, {WSCR}, v12")
    A("v_mov_b32 v13, 0")
    kmore(N2B, 99)
    A("s_waitcnt lgkmcnt(0)")
    A("s_barrier")
    stamp("b1")
    n_b1 = len(vm.log)
    kmore(N2C, 99)
    L = only_wave(PUBW)
    A("s_setprio 3")
    A(f"s_waitcnt vmcnt({len(vm.log) - n_ep})")
    A(f"v_readfirstlane_b32 s{sE}, v{vEp}")
    A(f"s_cmp_lg_u32 s{sE}, 0")
    A("s_cbranch_scc1 L_ep_ok")
    A("s_mov_b32 s65, 0")
    A("L_ep_loop:")
    A(f"global_load_dword v{vEp}, v13, s[22:23] sc1")
    A("s_waitcnt vmcnt(0)")
    A(f"v_readfirstlane_b32 s{sE}, v{vEp}")
    A("s_add_u32 s65, s65, 1")
    A(f"s_cmp_ge_u32 s65, {SPIN_CAP}")
    A("s_cbranch_scc1 L_ep_ok")
    A(f"s_cmp_eq_u32 s{sE}, 0")
    A("s_cbranch_scc1 L_ep_loop")
    A("L_ep_ok:")
    A(f"ds_write_b32 v13, v{vEp} offset:{CNT+24}")
    for i in range(2):
        for w in range(8): A(f"ds_read_b128 v[{Z+4*w}:{Z+4*w+3}], v8 offset:{YP + i*1024 + w*2048}")
        if i == 0:
            A("v_lshrrev_b32 v11, 5, v1")
            A("v_lshlrev_b32 v11, 12, v11")
            A("v_and_b32 v12, 31, v1")
            A("v_lshl_add_u32 v11, v12, 4, v11")
            A(f"s_lshl_b32 s65, s{sH}, 14")
            A(f"s_lshl_b32 s66, s{sR}, 9")
            A("s_add_u32 s65, s65, s66")
            A(f"s_add_u32 s65, s65, {WS_Q}")
        A("s_waitcnt lgkmcnt(0)")
        sum8(Z)
        for e in range(4): A(f"v_perm_b32 v{P+4*i+e}, v{Z+e}, v{vEp}, s{SEL_INS+e}")
        if not nostore: A(f"buffer_store_dwordx4 v[{P+4*i}:{P+4*i+3}], v11, s[{WS_}:{WS_+3}], s65 offen offset:0 {STF}" if i == 0 else
          f"buffer_store_dwordx4 v[{P+4*i}:{P+4*i+3}], v11, s[{WS_}:{WS_+3}], s66 offen {STF}")
        if i == 0: A("s_add_u32 s66, s65, 8192")
    for w in range(8): A(f"ds_read_b128 v[{Z+4*w}:{Z+4*w+3}], v8 offset:{HLOC + w*1024}")
    A("v_cmp_le_u32 vcc, 6, v10")
    A("v_cndmask_b32 v11, 0, 1, vcc")
    A("v_mul_u32_u24 v12, 6, v11")
    A("v_sub_u32 v12, v10, v12")
    A("v_lshlrev_b32 v12, 4, v12")
    A("v_lshl_add_u32 v12, v11, 10, v12")
    A("v_lshl_add_u32 v12, v9, 11, v12")
    A(f"s_lshl_b32 s65, s{sH}, 13")
    A(f"s_lshl_b32 s66, s{sR}, 7")
    A("s_add_u32 s65, s65, s66")
    A(f"s_add_u32 s65, s65, {WS_H}")
    A("s_waitcnt lgkmcnt(0)")
    sum8(Z)
    for e in range(4): A(f"v_perm_b32 v{P+8+e}, v{Z+e}, v{vEp}, s{SEL_INS+e}")
    A("s_mov_b32 exec_lo, 0x0fff0fff"); A("s_mov_b32 exec_hi, 0x0fff0fff")
    if not nostore: A(f"buffer_store_dwordx4 v[{P+8}:{P+11}], v12, s[{WS_}:{WS_+3}], s65 offen {STF}")
    A("s_mov_b64 exec, -1")
    A("s_setprio 0")
    A(f"{L}:")
    kmore(N3, 99)
    stamp("q_pub")
    def w2c(): transpose(Wr, 3); done.add("w2t")
    consumers["w22"] = (None, w2c)
    def woc(kc): transpose(woreg(4 * kc), 4); done.add(f"wot{kc}")
    for kc in range(4): consumers[f"wo{4*kc+3}"] = (None, (lambda kc=kc: woc(kc)))
    if skipw: done.add("w2t")
    else:
        for i in range(3): aux.append((f"w2{i}", (lambda i=i: w2(i)), None))
    if not skipwo:
        for t in range(NWZ): aux.append((f"wo{t}", (lambda t=t: wo(t)), None))
        for t in range(NWZ, 16): aux.append((f"wo{t}", (lambda t=t: wo(t)), (lambda: "ffn" in done)))
    GQD = accA
    kmore(GQ - kn[0])
    A(f"s_lshl_b32 s65, s{sH}, 2")
    A(f"s_add_u32 s65, s65, s{sB}")
    A("s_lshl_b32 s26, s65, 12")
    A(f"s_add_u32 s26, s26, {WS_Q}")
    A("s_lshl_b32 s87, s65, 1")
    A(f"s_add_u32 s87, s87, s{sS}")
    A("s_lshl_b32 s87, s87, 10")
    A(f"s_add_u32 s87, s87, {WS_H}")
    def gq_loads(fl="sc1"):
        for i in range(4): A(f"buffer_load_dwordx4 v[{GQD+4*i}:{GQD+4*i+3}], v8, s[{WS_}:{WS_+3}], s26 offen offset:{i*1024} {fl}")
    def gh_load(fl="sc1"): A(f"buffer_load_dwordx4 v[{GQD}:{GQD+3}], v8, s[{WS_}:{WS_+3}], s87 offen {fl}")
    L = only_wave(GQWV); gq_loads(GLF); A(f"{L}:")
    L = only_wave(GHWV); gh_load(GLF); A(f"{L}:")
    n_g = len(vm.log)
    kmore(GQW)
    nafter = len(vm.log) - n_g
    L = only_wave(GQWV)
    get_epoch("e1")
    A(f"s_waitcnt vmcnt({nafter})")
    def gqcheck():
        for i in range(4): tagcheck(GQD + 4 * i, P + 2 * i)
        for i in range(4): A(f"v_xor_b32 v{P+2*i}, v{P+2*i}, v{vEp}")
        A(f"v_or3_b32 v{P}, v{P}, v{P+2}, v{P+4}")
        A(f"v_or_b32 v{P}, v{P}, v{P+6}")
        A(f"v_cmp_ne_u32 s[90:91], 0, v{P}")
    gqcheck()
    A("s_cmp_eq_u64 s[90:91], 0")
    A("s_cbranch_scc1 L_gq_ok")
    if nostore: A("s_branch L_gq_ok")
    A("s_mov_b32 s65, 0")
    A("L_gq_loop:")
    gq_loads()
    A("s_waitcnt vmcnt(0)")
    gqcheck()
    A("s_add_u32 s65, s65, 1")
    A(f"s_cmp_ge_u32 s65, {SPIN_CAP}")
    A("s_cbranch_scc1 L_gq_ok")
    A("s_cmp_lg_u64 s[90:91], 0")
    A("s_cbranch_scc1 L_gq_loop")
    A("L_gq_ok:")
    untag(GQD, 16)
    for (a, b) in ((0, 1), (2, 3), (0, 2)):
        for e in (0, 2):
            A(f"v_pk_add_f32 v[{GQD+4*a+e}:{GQD+4*a+e+1}], v[{GQD+4*a+e}:{GQD+4*a+e+1}], v[{GQD+4*b+e}:{GQD+4*b+e+1}]")
    A(f"v_permlane32_swap_b32 v{GQD}, v{GQD+2}")
    A(f"v_permlane32_swap_b32 v{GQD+1}, v{GQD+3}")
    A(f"v_add_f32 v{GQD}, v{GQD}, v{GQD+2}")
    A(f"v_add_f32 v{GQD+1}, v{GQD+1}, v{GQD+3}")
    A(f"v_cvt_pk_bf16_f32 v{GQD}, v{GQD}, v{GQD+1}")
    A("v_and_b32 v11, 31, v1")
    A("v_lshlrev_b32 v11, 1, v11")
    A("v_lshrrev_b32 v12, 5, v1")
    A("v_add_u32 v11, v11, v12")
    A("v_lshlrev_b32 v11, 2, v11")
    A(f"ds_write_b32 v11, v{GQD} offset:{QS}")
    lds_flag(CNT + 16, GQD + 1)
    A(f"{L}:")
    stamp("gq_done")
    L = only_wave(GHWV)
    get_epoch("e2")
    A(f"s_waitcnt vmcnt({nafter})")
    A("s_mov_b32 s68, 0x3f3f3f3f"); A("s_mov_b32 s69, 0x3f3f3f3f")
    def ghcheck():
        tagcheck(GQD, P)
        A(f"v_cmp_ne_u32 s[90:91], v{P}, v{vEp}")
        A("s_and_b64 s[90:91], s[90:91], s[68:69]")
    ghcheck()
    A("s_cbranch_scc0 L_gh_ok")
    if nostore: A("s_branch L_gh_ok")
    A("s_mov_b32 s65, 0")
    A("L_gh_loop:")
    gh_load()
    A("s_waitcnt vmcnt(0)")
    ghcheck()
    A("s_cbranch_scc0 L_gh_ok")
    A("s_add_u32 s65, s65, 1")
    A(f"s_cmp_lt_u32 s65, {SPIN_CAP}")
    A("s_cbranch_scc1 L_gh_loop")
    A("L_gh_ok:")
    untag(GQD, 4)
    A(f"v_permlane32_swap_b32 v{GQD}, v{GQD+2}")
    A(f"v_permlane32_swap_b32 v{GQD+1}, v{GQD+3}")
    A(f"v_add_f32 v{GQD}, v{GQD}, v{GQD+2}")
    A(f"v_add_f32 v{GQD+1}, v{GQD+1}, v{GQD+3}")
    A(f"v_permlane16_swap_b32 v{GQD}, v{GQD+1}")
    A(f"v_add_f32 v{GQD}, v{GQD}, v{GQD+1}")
    A(f"v_add_f32_dpp v{GQD}, v{GQD}, v{GQD} row_ror:8 {DPPM}")
    bf16r(A, GQD, GQD)
    A(f"v_mul_f32 v{GQD+1}, 0xbfb8aa3b, v{GQD}")
    A(f"v_exp_f32 v{GQD+1}, v{GQD+1}")
    A(f"v_add_f32 v{GQD+1}, 1.0, v{GQD+1}")
    A(f"v_rcp_f32 v{GQD+1}, v{GQD+1}")
    A(f"v_mul_f32 v{GQD}, v{GQD}, v{GQD+1}")
    A(f"v_cvt_pk_bf16_f32 v{GQD}, v{GQD}, v{GQD}")
    A("v_and_b32 v11, 7, v10")
    A("v_lshl_add_u32 v11, v11, 2, v9")
    A("v_lshlrev_b32 v11, 1, v11")
    A("s_mov_b32 exec_lo, 0x003f003f"); A("s_mov_b32 exec_hi, 0x003f003f")
    A(f"ds_write_b16 v11, v{GQD} offset:{HB + 8*HBP}")
    A("s_mov_b64 exec, -1")
    lds_flag(CNT + 8, GQD + 1)
    A(f"{L}:")
    kmore(32 - kn[0])
    stamp("k31_iss")
    spin_lds(CNT + 16, 0 if (nosvc or nogather) else 1, "q")
    A("v_lshlrev_b32 v11, 4, v10")
    A(f"ds_read_b128 v[{Q}:{Q+3}], v11 offset:{QS}")
    A("v_mov_b32 v12, 0")
    A(f"ds_read_b32 v{vEp}, v12 offset:{CNT+24}")
    A("s_waitcnt lgkmcnt(0)")
    A(f"v_readfirstlane_b32 s{sE}, v{vEp}")
    stamp("q_ready")
    A.c("K phase")
    ready.add("q")
    run_consumers()
    while any(f"k{t}" in pending for t in range(16)):
        drain_to([n for n in pending if n.startswith("k")][0])
    treduce(A, P, None, R0)
    ready.add("q2")
    vn = [0]
    def vmore(w):
        viss(vn[0], w); vn[0] += 1
        auxstep(RV, w)
    while any(n.startswith("k") for n in pending):
        run_consumers()
        if not any(n.startswith("k") for n in pending): break
        if vn[0] < 16: vmore(WV)
        else: drain_to([n for n in pending if n.startswith("k")][0])
    treduce(A, P, None, R1)
    stamp("k_done")
    while vn[0] < 32 and vm.outstanding() < WV: vmore(WV)
    A(f"v_cvt_pk_bf16_f32 v{P}, v{R0}, v{R1}")
    A(f"v_lshlrev_b32 v{R0}, 16, v{P}")
    A(f"v_and_b32 v{R1}, 0xffff0000, v{P}")
    A(f"v_mul_f32 v{R0}, 0x3db504f3, v{R0}")
    A(f"v_mul_f32 v{R1}, 0x3db504f3, v{R1}")
    A(f"v_cvt_pk_bf16_f32 v{P}, v{R0}, v{R1}")
    A(f"v_lshlrev_b32 v{R0}, 16, v{P}")
    A(f"v_and_b32 v{R1}, 0xffff0000, v{P}")
    A(f"v_max_f32 v{P}, v{R0}, v{R1}")
    wave_reduce(A, P, "v_max_f32", 65)
    A(f"v_subrev_f32 v{R0}, s65, v{R0}")
    A(f"v_subrev_f32 v{R1}, s65, v{R1}")
    A(f"v_mul_f32 v{R0}, 0x3fb8aa3b, v{R0}")
    A(f"v_mul_f32 v{R1}, 0x3fb8aa3b, v{R1}")
    A(f"v_exp_f32 v{R0}, v{R0}")
    A(f"v_exp_f32 v{R1}, v{R1}")
    A(f"v_cvt_pk_bf16_f32 v{P}, v{R0}, v{R1}")
    A(f"v_and_b32 v{PL0}, 0xffff, v{P}")
    A(f"v_lshlrev_b32 v{PH0}, 16, v{P}")
    A(f"v_lshrrev_b32 v{PL1}, 16, v{P}")
    A(f"v_and_b32 v{PH1}, 0xffff0000, v{P}")
    A(f"v_add_f32 v{P+1}, v{R0}, v{R1}")
    wave_reduce(A, P + 1, "v_add_f32", 66)
    A(f"v_mov_b32 v{P+2}, s65")
    A(f"v_mov_b32 v{P+3}, s66")
    A(f"v_lshlrev_b32 v11, 3, v7")
    A(f"ds_write_b64 v11, v[{P+2}:{P+3}] offset:{ML}")
    lds_flag(CNT, P + 4)
    zero(A, accA, 8)
    spin_lds(CNT + 8, 0 if (nosvc or nogather) else 1, "h")
    A(f"v_mul_u32_u24 v12, {HBP}, v10")
    A("v_lshl_add_u32 v12, v9, 4, v12")
    A(f"ds_read_b128 v[{P}:{P+3}], v12 offset:{HB}")
    if "w2t" not in done: drain_to("w22")
    assert "w2t" in done
    A("s_waitcnt lgkmcnt(0)")
    for nt in range(4): A(f"v_mfma_f32_16x16x32_bf16 v[{D+4*nt}:{D+4*nt+3}], v[{P}:{P+3}], v[{Wr+4*nt}:{Wr+4*nt+3}], 0")
    done.add("ffn")
    ready.add("p")
    stamp("p_done")
    run_consumers()
    A.c("V phase")
    A(f"s_lshl_b32 s67, s{sB}, 6")
    A(f"s_add_u32 s67, s67, s{sP}")
    def ml_publish():
        if noml: return
        L = only_wave(0)
        spin_lds(CNT, 8, "ml")
        A("v_and_b32 v12, 7, v1")
        A("v_lshlrev_b32 v12, 3, v12")
        A(f"ds_read_b64 v[{P+6}:{P+7}], v12 offset:{ML}")
        A("s_waitcnt lgkmcnt(0)")
        A(f"v_mov_b32 v{P+8}, v{P+6}")
        for d in ("quad_perm:[1,0,3,2]", "quad_perm:[2,3,0,1]", "row_half_mirror"):
            A(f"v_max_f32_dpp v{P+8}, v{P+8}, v{P+8} {d} {DPPM}")
        A(f"v_sub_f32 v{P+6}, v{P+6}, v{P+8}")
        A(f"v_mul_f32 v{P+6}, 0x3fb8aa3b, v{P+6}")
        A(f"v_exp_f32 v{P+6}, v{P+6}")
        A(f"v_mul_f32 v{P+9}, v{P+7}, v{P+6}")
        for d in ("quad_perm:[1,0,3,2]", "quad_perm:[2,3,0,1]", "row_half_mirror"):
            A(f"v_add_f32_dpp v{P+9}, v{P+9}, v{P+9} {d} {DPPM}")
        A(f"v_mov_b32 v{P+10}, s{sE}")
        A(f"v_not_b32 v{P+11}, v{P+10}")
        A("s_lshl_b32 s65, s67, 4")
        A(f"s_add_u32 s65, s65, {WS_ML}")
        A("s_mov_b64 exec, 1")
        A(f"buffer_store_dwordx4 v[{P+8}:{P+11}], v11, s[{WS_}:{WS_+3}], s65 offen {STF}")
        A("s_mov_b64 exec, -1")
        A(f"{L}:")
    def pm_load():
        A("s_xor_b32 s65, s67, 1")
        A("s_lshl_b32 s65, s65, 4")
        A(f"s_add_u32 s26, s65, {WS_ML}")
        A("v_mov_b32 v11, 0")
        L = only_wave(0)
        A(f"buffer_load_dwordx4 v[{P+12}:{P+15}], v11, s[{WS_}:{WS_+3}], s26 offen sc1")
        A(f"{L}:")
    published = [False]; pmdone = [False]
    while vn[0] < 32:
        if vn[0] >= VML and not published[0]:
            ml_publish(); published[0] = True
        if vn[0] >= PMAT and not pmdone[0]:
            pm_load(); pmdone[0] = True; n_pm = len(vm.log)
        run_consumers()
        vmore(WV)
    if not published[0]: ml_publish()
    while aux:
        name, fn, cond = aux.pop(0)
        assert cond is None or cond()
        issue(fn, name, WV)
    if not pmdone[0]:
        pm_load(); n_pm = len(vm.log)
    while any(n.startswith(("v", "wo")) and n in consumers for n in pending):
        drain_to([n for n in pending if n.startswith(("v", "wo")) and n in consumers][0])
    stamp("v_done")
    if notail:
        A("s_waitcnt vmcnt(0)")
        A("s_branch L_main_end")
    A.c("tail")
    greduce(A, accA)
    A(f"v_cvt_pk_bf16_f32 v{accA}, v{accA}, v{accA+1}")
    A(f"ds_write_b32 v14, v{accA} offset:{OB}")
    A(f"v_mul_u32_u24 v12, {OBP}, v10")
    A("v_lshl_add_u32 v12, v9, 4, v12")
    L = only_wave(0)
    A(f"s_waitcnt vmcnt({min(len(vm.log) - n_pm, 63)})")
    A(f"v_readfirstlane_b32 s65, v{P+14}")
    A(f"s_cmp_eq_u32 s65, s{sE}")
    A("s_cbranch_scc1 L_pm_ok")
    A("s_mov_b32 s66, 0")
    A("L_pm_loop:")
    A(f"buffer_load_dwordx4 v[{P+12}:{P+15}], v11, s[{WS_}:{WS_+3}], s26 offen sc1")
    A("s_waitcnt vmcnt(0)")
    A(f"v_readfirstlane_b32 s65, v{P+14}")
    A("s_add_u32 s66, s66, 1")
    A(f"s_cmp_ge_u32 s66, {SPIN_CAP}")
    A("s_cbranch_scc1 L_pm_ok")
    A(f"s_cmp_lg_u32 s65, s{sE}")
    A("s_cbranch_scc1 L_pm_loop")
    A("L_pm_ok:")
    A(f"ds_write_b64 v11, v[{P+12}:{P+13}] offset:{ML+64}")
    A(f"{L}:")
    A("s_waitcnt lgkmcnt(0)")
    A("s_barrier")
    stamp("b3")
    AF = TLO
    A(f"ds_read_b64 v[{P+8}:{P+9}], v15 offset:{ML}")
    for kc in range(4): A(f"ds_read_b128 v[{AF+4*kc}:{AF+4*kc+3}], v12 offset:{OB + kc*64}")
    A("v_lshrrev_b32 v11, 2, v1")
    A("v_lshl_add_u32 v11, v7, 4, v11")
    A("v_lshrrev_b32 v14, 1, v11")
    A("v_lshlrev_b32 v14, 11, v14")
    A("v_and_b32 v11, 1, v11")
    A("v_lshl_add_u32 v14, v11, 4, v14")
    A(f"s_lshl_b32 s65, s{sB}, 17")
    A(f"s_lshl_b32 s66, s{sP}, 5")
    A("s_add_u32 s65, s65, s66")
    A("s_waitcnt lgkmcnt(0)")
    sc = []
    sc.append(f"v_mov_b32 v{P+10}, v{P+8}")
    for d in ("quad_perm:[1,0,3,2]", "quad_perm:[2,3,0,1]", "row_half_mirror", "row_mirror"):
        sc.append(f"v_max_f32_dpp v{P+10}, v{P+10}, v{P+10} {d} {DPPM}")
    sc.append(f"v_sub_f32 v{P+8}, v{P+8}, v{P+10}")
    sc.append(f"v_mul_f32 v{P+8}, 0x3fb8aa3b, v{P+8}")
    sc.append(f"v_exp_f32 v{P+8}, v{P+8}")
    sc.append(f"v_mul_f32 v{P+9}, v{P+9}, v{P+8}")
    for d in ("quad_perm:[1,0,3,2]", "quad_perm:[2,3,0,1]", "row_half_mirror", "row_mirror"):
        sc.append(f"v_add_f32_dpp v{P+9}, v{P+9}, v{P+9} {d} {DPPM}")
    sc.append(f"v_rcp_f32 v{P+9}, v{P+9}")
    sc.append(f"v_cmp_gt_u32 s[70:71], 8, v10")
    sc.append(f"v_cmp_eq_u32 s[72:73], 8, v10")
    sc.append(f"v_mul_f32 v{P+8}, v{P+8}, v{P+9}")
    sc.append(f"v_cndmask_b32 v{P+8}, 0, v{P+8}, s[70:71]")
    sc.append(f"v_cndmask_b32 v{P+8}, v{P+8}, 1.0, s[72:73]")
    sc.append(f"v_lshlrev_b32 v11, 2, v10")
    sc.append(f"ds_write_b32 v11, v{P+8} offset:{SC}")
    sc.append(f"v_lshlrev_b32 v11, 4, v9")
    sc.append(f"ds_read_b128 v[{P}:{P+3}], v11 offset:{SC}")
    mf = []
    for kc in range(4):
        for nt in range(4):
            mf.append(f"v_mfma_f32_16x16x32_bf16 v[{D+4*nt}:{D+4*nt+3}], v[{AF+4*kc}:{AF+4*kc+3}], v[{woreg(4*kc)+4*nt}:{woreg(4*kc)+4*nt+3}], v[{D+4*nt}:{D+4*nt+3}]")
    k = 0
    for m in mf:
        A(m)
        for _ in range(2):
            if k < len(sc): A(sc[k]); k += 1
    while k < len(sc): A(sc[k]); k += 1
    A("s_waitcnt lgkmcnt(0)")
    Y = P + 4
    for nt in range(4):
        A(f"v_mul_f32 v{Y+nt}, v{P}, v{D+4*nt}")
        for r in range(1, 4): A(f"v_fmac_f32 v{Y+nt}, v{P+r}, v{D+4*nt+r}")
    A(f"v_permlane32_swap_b32 v{Y}, v{Y+2}")
    A(f"v_permlane32_swap_b32 v{Y+1}, v{Y+3}")
    A(f"v_add_f32 v{Y}, v{Y}, v{Y+2}")
    A(f"v_add_f32 v{Y+1}, v{Y+1}, v{Y+3}")
    A(f"v_permlane16_swap_b32 v{Y}, v{Y+1}")
    A(f"v_add_f32 v{Y}, v{Y}, v{Y+1}")
    for e in range(1, 4): A(f"v_mov_b32_dpp v{Y+e}, v{Y} quad_perm:[{e},{e},{e},{e}] {DPPM}")
    for e in range(4): A(f"v_perm_b32 v{P+8+e}, v{Y+e}, v{vEp}, s{SEL_INS+e}")
    A("s_mov_b32 exec_lo, 0x11111111"); A("s_mov_b32 exec_hi, 0x11111111")
    A(f"buffer_store_dwordx4 v[{P+8}:{P+11}], v14, s[{WS_}:{WS_+3}], s65 offen {STF}")
    A("s_mov_b64 exec, -1")
    stamp("y_sent")
    if nofin: A("s_branch L_main_end")
    A(f"s_cmp_lg_u32 s{sW}, 0")
    A("s_cbranch_scc1 L_fin_skip")
    A("s_lshl_b32 s65, s67, 11")
    A("s_mov_b64 s[66:67], -1")
    A("s_mov_b64 s[68:69], -1")
    A("s_mov_b32 s26, 0")
    FA, FB = P, P + 4
    A("L_fin_loop:")
    A("s_mov_b64 exec, s[66:67]")
    A(f"buffer_load_dwordx4 v[{FA}:{FA+3}], v8, s[{WS_}:{WS_+3}], s65 offen sc1")
    A("s_mov_b64 exec, s[68:69]")
    A(f"buffer_load_dwordx4 v[{FB}:{FB+3}], v8, s[{WS_}:{WS_+3}], s65 offen offset:1024 sc1")
    A("s_mov_b64 exec, -1")
    A("s_waitcnt vmcnt(0)")
    tagcheck(FA, P + 8); tagcheck(FB, P + 10)
    A(f"v_cmp_ne_u32 s[66:67], v{P+8}, v{vEp}")
    A(f"v_cmp_ne_u32 s[68:69], v{P+10}, v{vEp}")
    A("s_or_b64 s[90:91], s[66:67], s[68:69]")
    A("s_cbranch_scc0 L_fin_done")
    if sleep: A(f"s_sleep {sleep}")
    A("s_add_u32 s26, s26, 1")
    A(f"s_cmp_lt_u32 s26, {SPIN_CAP}")
    A("s_cbranch_scc1 L_fin_loop")
    A("L_fin_done:")
    stamp("polled")
    untag(FA, 8)
    for e in range(4): A(f"v_add_f32 v{FA+e}, v{FA+e}, v{FB+e}")
    A(f"v_permlane32_swap_b32 v{FA}, v{FA+2}")
    A(f"v_permlane32_swap_b32 v{FA+1}, v{FA+3}")
    A(f"v_add_f32 v{FA}, v{FA}, v{FA+2}")
    A(f"v_add_f32 v{FA+1}, v{FA+1}, v{FA+3}")
    A(f"v_permlane16_swap_b32 v{FA}, v{FA+1}")
    A(f"v_add_f32 v{FA}, v{FA}, v{FA+1}")
    for d in ("quad_perm:[2,3,0,1]", "row_ror:4", "row_ror:8"):
        A(f"v_add_f32_dpp v{FA}, v{FA}, v{FA} {d} {DPPM}")
    A(f"v_lshlrev_b32 v{vX}, 16, v{vX}")
    A(f"v_add_f32 v{FA}, v{FA}, v{vX}")
    A(f"v_cvt_pk_bf16_f32 v{FA}, v{FA}, v{FA}")
    A("v_and_b32 v11, 1, v10")
    A("v_lshl_add_u32 v11, v11, 2, v9")
    A(f"s_lshl_b32 s65, s{sP}, 3")
    A(f"s_lshl_b32 s66, s{sB}, 9")
    A("s_add_u32 s65, s65, s66")
    A("v_add_u32 v11, s65, v11")
    A("v_lshlrev_b32 v11, 1, v11")
    A("s_mov_b32 s66, 0x00030003")
    A("s_mov_b32 exec_lo, s66")
    A("s_mov_b32 exec_hi, s66")
    A(f"global_store_short v11, v{FA}, s[20:21] {OUTF}")
    A("s_mov_b64 exec, -1")
    A("L_fin_skip:")
    if stamps:
        stamp("end")
        A("s_waitcnt lgkmcnt(0)")
        for i in range(len(STAMP_NAMES)): A(f"v_writelane_b32 v255, s{STREGS[i]}, {i}")
        A(f"s_lshl_b32 s68, s{sW}, 16")
        A("s_lshl_b32 s69, s2, 8")
        A("s_add_u32 s68, s68, s69")
        A(f"s_add_u32 s68, s68, {WS_ST}")
        A("v_lshlrev_b32 v12, 2, v1")
        A(f"buffer_store_dword v255, v12, s[{WS_}:{WS_+3}], s68 offen")
    A("L_main_end:")
    A("s_endpgm")
    return A

def build(**kw):
    m = gen_main(**kw)
    s = HEADER
    s += f"; @launch grid=(256,1,1) block=(512,1,1) lds={LDS_TOTAL}\n"
    s += '.amdgcn_target "amdgcn-amd-amdhsa--gfx950"\n.text\n'
    nm = NAME + "_kernel"
    s += f".globl {nm}\n.p2align 8\n.type {nm},@function\n{nm}:\n" + m.text()
    s += '.section .rodata,"a"\n.p2align 6\n'
    s += kd(nm, 256, 102)
    return s

if __name__ == "__main__":
    out = sys.argv[1] if len(sys.argv) > 1 else f"cdna_kernels/{NAME}.s"
    kw = {}
    for a in sys.argv[2:]:
        if "=" in a:
            k, v = a.split("=", 1)
            kw[k] = int(v) if v.lstrip("-").isdigit() else v
    if "stamps" in sys.argv: kw["stamps"] = True
    open(out, "w").write(build(**kw))
    if STAMP_NAMES: open(out + ".stamps", "w").write(",".join(STAMP_NAMES))
    print("written", out)
```

```python
import sys
from asmlib import Asm
from gen1 import (NAME, HEADER, VM, DPPM, acc8, zero, greduce, wave_reduce, treduce, bf16r, srd, kd)
STAMP_NAMES = []

XN = 0
QS = 4096
ML = QS + 256
CNT = ML + 128
ZR = CNT + 128
OBP = 272; HBP = 80
OB = ZR
HB = OB + 16 * OBP
SC = HB + 16 * HBP
HLOC = ZR + 8192
YP = HLOC + 8192
SPITCH = 144
WSCR = YP + 16384
LDS_TOTAL = WSCR + 8 * 32 * SPITCH

WS_Y = 0
WS_ML = 0x80000
WS_Q = 0x90000
WS_H = 0x110000
WS_ST = 0x180000
SPIN_CAP = 200000

def gen_main(LD="nt", WLD="nt", stamps=False, W=6, WV=None, N0=4, N1=4, N2=2, N2B=1, N3=3, GQ=20, GQW=6, VML=16,
             RK=3, RV=2, NWZ=12, STF="sc1", sleep=0, notail=0, skipwo=0, PUBW=3, GQWV=1, GHWV=2, HBMWIN=0, N2C=0, nostore=0, nogather=0, noml=0, nopubc=0, YHO=0, PSL=6, VEND=99, WEND=6, DET=1, PMAT=99, nofin=0, GLF="sc1", skipw=0, nosvc=0, OUTF="", FPOLL=1):
    A = Asm(); vm = VM(A)
    accA, accB, Q, XL, XH, HL, HH = 16, 24, 32, 36, 37, 38, 39
    R0, R1, PL0, PH0, PL1, PH1 = 40, 41, 42, 43, 44, 45
    vX, vEp = 46, 47
    P, Wr, TLO, THI, Z = 48, 64, 80, 144, 208
    accQ, WQD, W1D = Z, Z + 32, Z + 40
    accH = [Wr, Wr + 8, accA, accB]
    vKV, vWQ, vW1, vWO = 2, 3, 4, 6
    vSW, vSR = 4, 5
    D = 24
    K_, V_, WQ_, W1_, W2_, WO_, X_, WS_ = 28, 32, 36, 40, 44, 48, 52, 56
    sB, sH, sS, sP, sW, sE, sR = 60, 61, 62, 63, 64, 27, 3
    SEL_INS, SEL_G0, SEL_G1 = 92, 96, 97
    STREGS = [74, 76, 78, 88, 98, 100, 14, 4, 6, 8, 10, 12, 16, 18]
    WV = W if WV is None else WV
    if nosvc: PUBW = GQWV = GHWV = 99
    if nogather: GQWV = GHWV = 99
    def stamp(label=""):
        if not stamps: return
        r = STREGS[len(STAMP_NAMES)]
        A(f"s_memrealtime s[{r}:{r+1}]")
        STAMP_NAMES.append(label)
    def lg(n): A(f"s_waitcnt lgkmcnt({0 if stamps else n})")
    lbl = [0]
    def only_wave(w):
        lbl[0] += 1; L = f"L_skip{lbl[0]}"
        A(f"s_cmp_lg_u32 s{sW}, {w}"); A(f"s_cbranch_scc1 {L}")
        return L
    def spin_lds(off, target, name):
        A("v_mov_b32 v11, 0"); A("s_mov_b32 s65, 0")
        A(f"L_{name}_loop:")
        A(f"ds_read_b32 v12, v11 offset:{off}")
        A("s_waitcnt lgkmcnt(0)")
        A("v_readfirstlane_b32 s66, v12")
        A("s_add_u32 s65, s65, 1")
        A(f"s_cmp_ge_u32 s65, {SPIN_CAP}")
        A(f"s_cbranch_scc1 L_{name}_ok")
        A(f"s_cmp_lg_u32 s66, {target}")
        A(f"s_cbranch_scc1 L_{name}_loop")
        A(f"L_{name}_ok:")
    def get_epoch(name):
        A("v_mov_b32 v11, 0"); A("s_mov_b32 s65, 0")
        A(f"L_{name}_loop:")
        A(f"ds_read_b32 v{vEp}, v11 offset:{CNT+24}")
        A("s_waitcnt lgkmcnt(0)")
        A(f"v_readfirstlane_b32 s{sE}, v{vEp}")
        A("s_add_u32 s65, s65, 1")
        A(f"s_cmp_ge_u32 s65, {SPIN_CAP}")
        A(f"s_cbranch_scc1 L_{name}_ok")
        A(f"s_cmp_eq_u32 s{sE}, 0")
        A(f"s_cbranch_scc1 L_{name}_loop")
        A(f"L_{name}_ok:")
    def lds_flag(off, tmp, add=True):
        A("v_mov_b32 v12, 0"); A(f"v_mov_b32 v{tmp}, 1")
        A("s_mov_b64 exec, 1")
        A(f"ds_add_u32 v12, v{tmp} offset:{off}")
        A("s_mov_b64 exec, -1")
    def tagcheck(f, t):
        A(f"v_perm_b32 v{t}, v{f+1}, v{f}, s{SEL_G0}")
        A(f"v_perm_b32 v{t+1}, v{f+3}, v{f+2}, s{SEL_G1}")
        A(f"v_or_b32 v{t}, v{t}, v{t+1}")
    def untag(base, n, tmp=12):
        if not DET: return
        A(f"v_mov_b32 v{tmp}, 0x80")
        for i in range(n): A(f"v_perm_b32 v{base+i}, v{base+i}, v{tmp}, s{SEL_INS}")
    def sum8(base):
        for (a, b) in ((0, 1), (2, 3), (4, 5), (6, 7), (0, 2), (4, 6), (0, 4)):
            for e in (0, 2):
                A(f"v_pk_add_f32 v[{base+4*a+e}:{base+4*a+e+1}], v[{base+4*a+e}:{base+4*a+e+1}], v[{base+4*b+e}:{base+4*b+e+1}]")

    A("s_cmp_ge_u32 s2, 256")
    A("s_cbranch_scc1 L_main_end")
    stamp("entry")
    A("s_load_dwordx16 s[4:19], s[0:1], 0")
    A("s_load_dwordx4 s[20:23], s[0:1], 64")
    A("s_load_dwordx2 s[24:25], s[0:1], 80")
    A("s_and_b32 s65, s2, 7")
    A("s_lshr_b32 s66, s2, 3")
    A("s_lshr_b32 s67, s66, 3")
    A("s_lshl_b32 s68, s65, 2")
    A(f"s_add_u32 s{sH}, s67, s68")
    A(f"s_and_b32 s{sR}, s66, 7")
    A(f"s_lshr_b32 s{sB}, s{sR}, 1")
    A(f"s_and_b32 s{sS}, s66, 1")
    A(f"s_lshl_b32 s{sP}, s{sH}, 1")
    A(f"s_add_u32 s{sP}, s{sP}, s{sS}")
    A(f"s_lshl_b32 s65, s{sB}, 5")
    A(f"s_add_u32 s65, s65, s{sH}")
    A("s_lshl_b32 s65, s65, 21")
    A(f"s_lshl_b32 s66, s{sS}, 18")
    A("s_add_u32 s65, s65, s66")
    A(f"s_add_u32 s26, s65, {6144*256}")
    A("s_mov_b32 s84, 0")
    A("s_mov_b32 s85, 0")
    A("v_and_b32 v1, 63, v0")
    A("v_lshrrev_b32 v7, 6, v0")
    A("v_lshlrev_b32 v8, 4, v1")
    A(f"v_readfirstlane_b32 s{sW}, v7")
    A(f"v_lshl_add_u32 v{vKV}, v7, 10, v8")
    A("v_lshrrev_b32 v9, 4, v1")
    A("v_and_b32 v10, 15, v1")
    A(f"s_lshl_b32 s65, s{sR}, 6")
    A("v_lshlrev_b32 v13, 3, v7")
    A("v_add_u32 v13, s65, v13")
    A("v_add_u32 v11, v13, v9")
    A("v_lshlrev_b32 v11, 13, v11")
    A(f"v_lshl_add_u32 v{vWQ}, v10, 4, v11")
    A("v_add_u32 v11, v13, v9")
    A("v_mul_u32_u24 v11, 2752, v11")
    A(f"v_lshl_add_u32 v{vW1}, v10, 4, v11")
    A("v_mov_b32 v13, 0")
    A("s_waitcnt lgkmcnt(0)")
    srd(A, K_, 6, 26, 262144)

    def ld(name, reg, vaddr, srd_, soff, off, fl):
        o = f" offset:{off}" if off else ""
        vm.issue(name, f"buffer_load_dwordx4 v[{reg}:{reg+3}], v{vaddr}, s[{srd_}:{srd_+3}], {soff} offen{o} {fl}")
    def kv(kind, t):
        reg = (TLO + 4 * t) if t < 16 else (THI + 4 * (t - 16))
        so = 84 if kind == "k" else 85
        ld(f"{kind}{t}", reg, vKV, K_ if kind == "k" else V_, f"s{so}", 0, LD)
        if t < 31: A(f"s_add_u32 s{so}, s{so}, 8192")
    def w2(i): ld(f"w2{i}", Wr + 4 * i, vWO, W2_, f"s{80+i}", 0, WLD)
    def woreg(t): return (Z + 4 * t) if t < NWZ else (Wr + 4 * (t - NWZ))
    def wo(t):
        ld(f"wo{t}", woreg(t), vWO, WO_, "s83", 0, WLD)
        if t < 15: A("s_add_u32 s83, s83, 8192")
    def transpose(base, nraw):
        for i in range(4):
            if i < nraw: A(f"ds_write_b128 v{vSW}, v[{base+4*i}:{base+4*i+3}] offset:{i*8*SPITCH}")
            else:
                zero(A, base + 4 * i, 4)
                A(f"ds_write_b128 v{vSW}, v[{base+4*i}:{base+4*i+3}] offset:{i*8*SPITCH}")
        for nt in range(4):
            for half in range(2):
                A(f"ds_read_b64_tr_b16 v[{base+4*nt+2*half}:{base+4*nt+2*half+1}], v{vSR} offset:{half*4*SPITCH + nt*32}")
    consumers = {}; pending = []; ready = set(); done = set()
    def run_consumers():
        for n in list(pending):
            if n in vm.q: continue
            c = consumers.get(n)
            if c is None:
                pending.remove(n); continue
            cond, fn = c
            if cond is None or cond in ready:
                fn(); pending.remove(n)
    def issue(fn, name, w=None):
        w = W if w is None else w
        if HBMWIN and w < 90:
            isaux = not name.startswith(("k", "v"))
            hb_idx = [i for i, n in enumerate(vm.q) if n.startswith(("k", "v")) and not n.startswith("w")]
            if not isaux and len(hb_idx) >= w:
                vm.wait(vm.q[hb_idx[len(hb_idx) - w]]); run_consumers()
        elif vm.outstanding() >= w:
            vm.wait(vm.q[vm.outstanding() - w]); run_consumers()
        fn(); pending.append(name)
    def drain_to(name):
        vm.wait(name); run_consumers()
    def kcons(t):
        reg = (TLO + 4 * t) if t < 16 else (THI + 4 * (t - 16)); p = P + (t % 16)
        A(f"v_dot2_f32_bf16 v{p}, v{reg}, v{Q}, 0")
        for r in range(1, 4): A(f"v_dot2_f32_bf16 v{p}, v{reg+r}, v{Q+r}, v{p}")
    for t in range(32): consumers[f"k{t}"] = ("q" if t < 16 else "q2", (lambda t=t: kcons(t)))
    for t in range(32):
        reg = (TLO + 4 * t) if t < 16 else (THI + 4 * (t - 16))
        consumers[f"v{t}"] = ("p", (lambda t=t, reg=reg: acc8(A, accA, PL0 if t < 16 else PL1, PH0 if t < 16 else PH1, reg, f"row_newbcast:{t%16}")))
    kn = [0]; aux = []; hb = [0]
    def auxstep(R, w):
        hb[0] += 1
        if R and hb[0] % R == 0 and aux:
            name, fn, cond = aux[0]
            if cond is None or cond():
                aux.pop(0); issue(fn, name, w)
    def kmore(n, w=None):
        for _ in range(n):
            if kn[0] < 32:
                t = kn[0]; issue(lambda: kv("k", t), f"k{t}", w); kn[0] += 1
                auxstep(RK, w)
    def viss(t, w): issue(lambda: kv("v", t), f"v{t}", w)

    kmore(2, 99)
    A(f"s_or_b32 s65, s2, s{sW}")
    A("s_cmp_lg_u32 s65, 0")
    A("s_cbranch_scc1 L_noep")
    A("s_memrealtime s[90:91]")
    A("s_waitcnt lgkmcnt(0)")
    A("s_or_b32 s90, s90, 1")
    A("v_mov_b32 v12, s90")
    A("global_store_dword v13, v12, s[22:23] sc0 sc1")
    A("L_noep:")
    srd(A, X_, 4, None, 4096)
    A(f"s_cmp_ge_u32 s{sW}, 4")
    A("s_cbranch_scc1 L_nox")
    A(f"s_lshl_b32 s65, s{sW}, 10")
    A(f"buffer_load_dwordx4 v[{P}:{P+3}], v8, s[{X_}:{X_+3}], s65 offen")
    A("L_nox:")
    n_x = len(vm.log)
    A(f"s_lshl_b32 s65, s{sH}, 8")
    A(f"s_sub_u32 s66, {512*8192}, s65")
    srd(A, WQ_, 10, 65, "s66")
    if not skipw:
        ld("wq0", WQD, vWQ, WQ_, "0", 0, WLD)
        A("s_mov_b32 s65, 32768")
        ld("wq1", WQD + 4, vWQ, WQ_, "s65", 0, WLD)
    A(f"s_mul_i32 s65, s{sH}, 96")
    A(f"s_sub_u32 s66, {512*2752}, s65")
    A(f"s_cmp_lt_u32 s{sH}, 29")
    A("s_cselect_b32 s66, s66, 0")
    A("s_cselect_b32 s65, s65, 0")
    srd(A, W1_, 16, 65, "s66")
    A("s_mov_b32 exec_lo, 0x003f003f"); A("s_mov_b32 exec_hi, 0x003f003f")
    if not skipw:
        ld("w10", W1D, vW1, W1_, "0", 0, WLD)
        A(f"s_mov_b32 s65, {4*2752}")
        ld("w11", W1D + 4, vW1, W1_, "s65", 0, WLD)
    A("s_mov_b64 exec, -1")
    kmore(N0 - 2, 99)
    for i in range(3): A(f"s_mov_b32 s{80+i}, {i*8192}")
    A("s_mov_b32 s83, 0")
    A("v_and_b32 v11, 1, v1")
    A("v_cmp_ne_u32 s[70:71], 0, v11")
    A("v_and_b32 v11, 2, v1")
    A("v_cmp_ne_u32 s[72:73], 0, v11")
    A("v_lshrrev_b32 v11, 3, v1")
    A("v_lshlrev_b32 v11, 10, v11")
    A("v_lshl_add_u32 v11, v7, 7, v11")
    A("v_and_b32 v12, 7, v1")
    A(f"v_lshl_add_u32 v{vWO}, v12, 4, v11")
    A("v_lshrrev_b32 v11, 2, v10")
    A("v_lshl_add_u32 v11, v9, 3, v11")
    A(f"v_mul_u32_u24 v11, {SPITCH}, v11")
    A("v_and_b32 v12, 3, v10")
    A("v_lshl_add_u32 v11, v12, 3, v11")
    A(f"v_mul_u32_u24 v12, {32*SPITCH}, v7")
    A("v_add_u32 v11, v11, v12")
    A(f"v_add_u32 v{vSR}, {WSCR}, v11")
    srd(A, V_, 8, 26, 262144)
    A(f"s_mul_i32 s65, s{sP}, {24*1024}")
    A(f"s_sub_u32 s66, {1376*1024}, s65")
    A(f"s_cmp_lt_u32 s{sP}, 58")
    A("s_cselect_b32 s66, s66, 0")
    A("s_cselect_b32 s65, s65, 0")
    srd(A, W2_, 18, 65, "s66")
    A(f"s_lshl_b32 s65, s{sH}, 17")
    srd(A, WO_, 12, 65, 131072)
    srd(A, WS_, 24, None, 0x200000)
    for i in range(4): A(f"s_mov_b32 s{SEL_INS+i}, {0x07060500 | i}")
    A(f"s_mov_b32 s{SEL_G0}, 0x0c0c0400")
    A(f"s_mov_b32 s{SEL_G1}, 0x04000c0c")
    A(f"v_lshlrev_b32 v15, 3, v10")
    A(f"v_mov_b32 v{accA}, 0xff800000")
    A(f"v_mov_b32 v{accA+1}, 0")
    A(f"ds_write_b64 v15, v[{accA}:{accA+1}] offset:{ML}")
    A(f"ds_write_b32 v15, v{accA+1} offset:{CNT}")
    zero(A, accB, 4)
    A("v_lshlrev_b32 v11, 4, v0")
    A(f"ds_write_b128 v11, v[{accB}:{accB+3}] offset:{ZR}")
    A.c("layernorm")
    A(f"s_cmp_ge_u32 s{sW}, 4")
    A("s_cbranch_scc1 L_noln")
    A(f"s_waitcnt vmcnt({len(vm.log) - n_x})")
    F = P + 4; t0 = P + 12; zt = Z
    for i in range(4):
        A(f"v_lshlrev_b32 v{F+2*i}, 16, v{P+i}")
        A(f"v_and_b32 v{F+2*i+1}, 0xffff0000, v{P+i}")
    A(f"v_add_f32 v{t0}, v{F}, v{F+1}")
    for i in range(2, 8): A(f"v_add_f32 v{t0}, v{t0}, v{F+i}")
    wave_reduce(A, t0, "v_add_f32", 65)
    A(f"v_mov_b32 v{t0+1}, s65")
    A(f"v_mul_f32 v{t0+1}, 0x3b000000, v{t0+1}")
    A(f"v_sub_f32 v{t0+2}, v{F}, v{t0+1}")
    A(f"v_mul_f32 v{t0}, v{t0+2}, v{t0+2}")
    for i in range(1, 8):
        A(f"v_sub_f32 v{t0+2}, v{F+i}, v{t0+1}")
        A(f"v_fmac_f32 v{t0}, v{t0+2}, v{t0+2}")
    wave_reduce(A, t0, "v_add_f32", 65)
    A(f"v_mov_b32 v{t0+2}, s65")
    A(f"v_mul_f32 v{t0+2}, 0x3b000000, v{t0+2}")
    bf16r(A, t0 + 1, t0 + 1)
    bf16r(A, t0 + 2, t0 + 2)
    A(f"v_add_f32 v{t0+2}, 0x3727c5ac, v{t0+2}")
    bf16r(A, t0 + 2, t0 + 2)
    A(f"v_sqrt_f32 v{t0+2}, v{t0+2}")
    bf16r(A, t0 + 2, t0 + 2)
    A(f"v_rcp_f32 v{t0+3}, v{t0+2}")
    for i in range(8): A(f"v_sub_f32 v{F+i}, v{F+i}, v{t0+1}")
    for i in range(0, 8, 2): A(f"v_cvt_pk_bf16_f32 v{P+i//2}, v{F+i}, v{F+i+1}")
    for i in range(4):
        A(f"v_lshlrev_b32 v{F+2*i}, 16, v{P+i}")
        A(f"v_and_b32 v{F+2*i+1}, 0xffff0000, v{P+i}")
    for i in range(8): A(f"v_mul_f32 v{zt+i}, v{F+i}, v{t0+3}")
    for i in range(8): A(f"v_fma_f32 v{F+i}, -v{zt+i}, v{t0+2}, v{F+i}")
    for i in range(8): A(f"v_fmac_f32 v{zt+i}, v{F+i}, v{t0+3}")
    for i in range(0, 8, 2): A(f"v_cvt_pk_bf16_f32 v{P+i//2}, v{zt+i}, v{zt+i+1}")
    A("v_lshl_add_u32 v11, v7, 10, v8")
    A(f"ds_write_b128 v11, v[{P}:{P+3}] offset:{XN}")
    A("L_noln:")
    A(f"s_lshl_b32 s65, s{sR}, 6")
    A("v_lshlrev_b32 v13, 3, v7")
    A("v_add_u32 v13, s65, v13")
    A("v_add_u32 v11, v13, v9")
    A("v_lshlrev_b32 v11, 1, v11")
    A("v_lshrrev_b32 v12, 3, v10")
    A("v_lshl_add_u32 v11, v12, 10, v11")
    MK = Z + 16
    A("v_and_b32 v12, 1, v10")
    A("v_lshlrev_b32 v12, 4, v12")
    A("s_mov_b32 s65, 0xffff")
    A(f"v_lshlrev_b32 v12, v12, s65" if False else f"v_mov_b32 v{MK+4}, 0xffff")
    A(f"v_lshlrev_b32 v12, v12, v{MK+4}")
    A(f"v_bfe_u32 v{MK+4}, v10, 1, 2")
    for wq_ in range(4):
        A(f"v_cmp_eq_u32 vcc, {wq_}, v{MK+4}")
        A(f"v_cndmask_b32 v{MK+wq_}, 0, v12, vcc")
    A("v_mov_b32 v13, 0")
    A("s_waitcnt lgkmcnt(0)")
    A("s_barrier")
    stamp("b0")
    for t in range(2):
        for bp in range(2): A(f"ds_read_u16 v{P+2*t+bp}, v11 offset:{XN + bp*2048 + t*8}")
    L = only_wave(PUBW)
    A(f"global_load_dword v{vEp}, v13, s[22:23] sc1")
    A(f"{L}:")
    L = only_wave(0)
    A("v_and_b32 v11, 1, v10")
    A("v_lshl_add_u32 v11, v11, 2, v9")
    A(f"s_lshl_b32 s65, s{sP}, 3")
    A(f"s_lshl_b32 s66, s{sB}, 9")
    A("s_add_u32 s65, s65, s66")
    A("v_add_u32 v11, s65, v11")
    A("v_lshlrev_b32 v11, 1, v11")
    A(f"buffer_load_ushort v{vX}, v11, s[{X_}:{X_+3}], 0 offen")
    A(f"{L}:")
    n_ep = len(vm.log)
    kmore(N1, 99)
    A("s_waitcnt lgkmcnt(0)")
    AT = Z
    for k in range(4): A(f"v_lshl_or_b32 v{P+k}, v{P+k}, 16, v{P+k}")
    for k in range(4):
        for wq_ in range(4): A(f"v_and_b32 v{AT+4*k+wq_}, v{P+k}, v{MK+wq_}")
    vm.wait("wq1")
    for t in range(2):
        for bp in range(2):
            c = "0" if t == 0 else f"v[{accA+4*bp}:{accA+4*bp+3}]"
            A(f"v_mfma_f32_16x16x32_bf16 v[{accA+4*bp}:{accA+4*bp+3}], v[{AT+4*(2*t+bp)}:{AT+4*(2*t+bp)+3}], v[{WQD+4*t}:{WQD+4*t+3}], {c}")
    vm.wait("w11")
    for t in range(2):
        for bp in range(2):
            c = "0" if t == 0 else f"v[{accB+4*bp}:{accB+4*bp+3}]"
            A(f"v_mfma_f32_16x16x32_bf16 v[{accB+4*bp}:{accB+4*bp+3}], v[{AT+4*(2*t+bp)}:{AT+4*(2*t+bp)+3}], v[{W1D+4*t}:{W1D+4*t+3}], {c}")
    kmore(N2, 99)
    A("v_and_b32 v11, 1, v9")
    A("v_lshlrev_b32 v11, 4, v11")
    A("v_lshl_add_u32 v11, v10, 5, v11")
    A("v_lshrrev_b32 v12, 1, v9")
    A("v_lshl_add_u32 v13, v12, 9, v11")
    A("v_lshl_add_u32 v13, v7, 11, v13")
    A("v_lshl_add_u32 v12, v12, 8, v11")
    A("v_lshl_add_u32 v12, v7, 10, v12")
    for bp in range(2): A(f"ds_write_b128 v13, v[{accA+4*bp}:{accA+4*bp+3}] offset:{YP + bp*1024}")
    A("s_mov_b32 exec_lo, 0x003f003f"); A("s_mov_b32 exec_hi, 0x003f003f")
    for bp in range(2): A(f"ds_write_b128 v12, v[{accB+4*bp}:{accB+4*bp+3}] offset:{HLOC + bp*512}")
    A("s_mov_b64 exec, -1")
    A("v_lshl_add_u32 v14, v10, 2, v9")
    A("v_lshlrev_b32 v14, 2, v14")
    A(f"v_mul_u32_u24 v12, {OBP}, v7")
    A("v_add_u32 v14, v14, v12")
    A("v_lshrrev_b32 v12, 3, v1")
    A(f"v_mul_u32_u24 v12, {SPITCH}, v12")
    A("v_and_b32 v13, 7, v1")
    A("v_lshl_add_u32 v12, v13, 4, v12")
    A(f"v_mul_u32_u24 v13, {32*SPITCH}, v7")
    A("v_add_u32 v12, v12, v13")
    A(f"v_add_u32 v{vSW}, {WSCR}, v12")
    A("v_mov_b32 v13, 0")
    kmore(N2B, 99)
    A("s_waitcnt lgkmcnt(0)")
    A("s_barrier")
    stamp("b1")
    n_b1 = len(vm.log)
    kmore(N2C, 99)
    L = only_wave(PUBW)
    A("s_setprio 3")
    A(f"s_waitcnt vmcnt({len(vm.log) - n_ep})")
    A(f"v_readfirstlane_b32 s{sE}, v{vEp}")
    A(f"s_cmp_lg_u32 s{sE}, 0")
    A("s_cbranch_scc1 L_ep_ok")
    A("s_mov_b32 s65, 0")
    A("L_ep_loop:")
    A(f"global_load_dword v{vEp}, v13, s[22:23] sc1")
    A("s_waitcnt vmcnt(0)")
    A(f"v_readfirstlane_b32 s{sE}, v{vEp}")
    A("s_add_u32 s65, s65, 1")
    A(f"s_cmp_ge_u32 s65, {SPIN_CAP}")
    A("s_cbranch_scc1 L_ep_ok")
    A(f"s_cmp_eq_u32 s{sE}, 0")
    A("s_cbranch_scc1 L_ep_loop")
    A("L_ep_ok:")
    A(f"ds_write_b32 v13, v{vEp} offset:{CNT+24}")
    for i in range(2):
        for w in range(8): A(f"ds_read_b128 v[{Z+4*w}:{Z+4*w+3}], v8 offset:{YP + i*1024 + w*2048}")
        if i == 0:
            A("v_lshrrev_b32 v11, 5, v1")
            A("v_lshlrev_b32 v11, 12, v11")
            A("v_and_b32 v12, 31, v1")
            A("v_lshl_add_u32 v11, v12, 4, v11")
            A(f"s_lshl_b32 s65, s{sH}, 14")
            A(f"s_lshl_b32 s66, s{sR}, 9")
            A("s_add_u32 s65, s65, s66")
            A(f"s_add_u32 s65, s65, {WS_Q}")
        A("s_waitcnt lgkmcnt(0)")
        sum8(Z)
        for e in range(4): A(f"v_perm_b32 v{P+4*i+e}, v{Z+e}, v{vEp}, s{SEL_INS+e}")
        if not nostore: A(f"buffer_store_dwordx4 v[{P+4*i}:{P+4*i+3}], v11, s[{WS_}:{WS_+3}], s65 offen offset:0 {STF}" if i == 0 else
          f"buffer_store_dwordx4 v[{P+4*i}:{P+4*i+3}], v11, s[{WS_}:{WS_+3}], s66 offen {STF}")
        if i == 0: A("s_add_u32 s66, s65, 8192")
    for w in range(8): A(f"ds_read_b128 v[{Z+4*w}:{Z+4*w+3}], v8 offset:{HLOC + w*1024}")
    A("v_cmp_le_u32 vcc, 6, v10")
    A("v_cndmask_b32 v11, 0, 1, vcc")
    A("v_mul_u32_u24 v12, 6, v11")
    A("v_sub_u32 v12, v10, v12")
    A("v_lshlrev_b32 v12, 4, v12")
    A("v_lshl_add_u32 v12, v11, 10, v12")
    A("v_lshl_add_u32 v12, v9, 11, v12")
    A(f"s_lshl_b32 s65, s{sH}, 13")
    A(f"s_lshl_b32 s66, s{sR}, 7")
    A("s_add_u32 s65, s65, s66")
    A(f"s_add_u32 s65, s65, {WS_H}")
    A("s_waitcnt lgkmcnt(0)")
    sum8(Z)
    for e in range(4): A(f"v_perm_b32 v{P+8+e}, v{Z+e}, v{vEp}, s{SEL_INS+e}")
    A("s_mov_b32 exec_lo, 0x0fff0fff"); A("s_mov_b32 exec_hi, 0x0fff0fff")
    if not nostore: A(f"buffer_store_dwordx4 v[{P+8}:{P+11}], v12, s[{WS_}:{WS_+3}], s65 offen {STF}")
    A("s_mov_b64 exec, -1")
    A("s_setprio 0")
    A(f"{L}:")
    kmore(N3, 99)
    stamp("q_pub")
    def w2c(): transpose(Wr, 3); done.add("w2t")
    consumers["w22"] = (None, w2c)
    def woc(kc): transpose(woreg(4 * kc), 4); done.add(f"wot{kc}")
    for kc in range(4): consumers[f"wo{4*kc+3}"] = (None, (lambda kc=kc: woc(kc)))
    if skipw: done.add("w2t")
    else:
        for i in range(3): aux.append((f"w2{i}", (lambda i=i: w2(i)), None))
    if not skipwo:
        for t in range(NWZ): aux.append((f"wo{t}", (lambda t=t: wo(t)), None))
        for t in range(NWZ, 16): aux.append((f"wo{t}", (lambda t=t: wo(t)), (lambda: "ffn" in done)))
    GQD = accA
    kmore(GQ - kn[0])
    A(f"s_lshl_b32 s65, s{sH}, 2")
    A(f"s_add_u32 s65, s65, s{sB}")
    A("s_lshl_b32 s26, s65, 12")
    A(f"s_add_u32 s26, s26, {WS_Q}")
    A("s_lshl_b32 s87, s65, 1")
    A(f"s_add_u32 s87, s87, s{sS}")
    A("s_lshl_b32 s87, s87, 10")
    A(f"s_add_u32 s87, s87, {WS_H}")
    def gq_loads(fl="sc1"):
        for i in range(4): A(f"buffer_load_dwordx4 v[{GQD+4*i}:{GQD+4*i+3}], v8, s[{WS_}:{WS_+3}], s26 offen offset:{i*1024} {fl}")
    def gh_load(fl="sc1"): A(f"buffer_load_dwordx4 v[{GQD}:{GQD+3}], v8, s[{WS_}:{WS_+3}], s87 offen {fl}")
    L = only_wave(GQWV); gq_loads(GLF); A(f"{L}:")
    L = only_wave(GHWV); gh_load(GLF); A(f"{L}:")
    n_g = len(vm.log)
    kmore(GQW)
    nafter = len(vm.log) - n_g
    L = only_wave(GQWV)
    get_epoch("e1")
    A(f"s_waitcnt vmcnt({nafter})")
    def gqcheck():
        for i in range(4): tagcheck(GQD + 4 * i, P + 2 * i)
        for i in range(4): A(f"v_xor_b32 v{P+2*i}, v{P+2*i}, v{vEp}")
        A(f"v_or3_b32 v{P}, v{P}, v{P+2}, v{P+4}")
        A(f"v_or_b32 v{P}, v{P}, v{P+6}")
        A(f"v_cmp_ne_u32 s[90:91], 0, v{P}")
    gqcheck()
    A("s_cmp_eq_u64 s[90:91], 0")
    A("s_cbranch_scc1 L_gq_ok")
    if nostore: A("s_branch L_gq_ok")
    A("s_mov_b32 s65, 0")
    A("L_gq_loop:")
    gq_loads()
    A("s_waitcnt vmcnt(0)")
    gqcheck()
    A("s_add_u32 s65, s65, 1")
    A(f"s_cmp_ge_u32 s65, {SPIN_CAP}")
    A("s_cbranch_scc1 L_gq_ok")
    A("s_cmp_lg_u64 s[90:91], 0")
    A("s_cbranch_scc1 L_gq_loop")
    A("L_gq_ok:")
    untag(GQD, 16)
    for (a, b) in ((0, 1), (2, 3), (0, 2)):
        for e in (0, 2):
            A(f"v_pk_add_f32 v[{GQD+4*a+e}:{GQD+4*a+e+1}], v[{GQD+4*a+e}:{GQD+4*a+e+1}], v[{GQD+4*b+e}:{GQD+4*b+e+1}]")
    A(f"v_permlane32_swap_b32 v{GQD}, v{GQD+2}")
    A(f"v_permlane32_swap_b32 v{GQD+1}, v{GQD+3}")
    A(f"v_add_f32 v{GQD}, v{GQD}, v{GQD+2}")
    A(f"v_add_f32 v{GQD+1}, v{GQD+1}, v{GQD+3}")
    A(f"v_cvt_pk_bf16_f32 v{GQD}, v{GQD}, v{GQD+1}")
    A("v_and_b32 v11, 31, v1")
    A("v_lshlrev_b32 v11, 1, v11")
    A("v_lshrrev_b32 v12, 5, v1")
    A("v_add_u32 v11, v11, v12")
    A("v_lshlrev_b32 v11, 2, v11")
    A(f"ds_write_b32 v11, v{GQD} offset:{QS}")
    lds_flag(CNT + 16, GQD + 1)
    A(f"{L}:")
    stamp("gq_done")
    L = only_wave(GHWV)
    get_epoch("e2")
    A(f"s_waitcnt vmcnt({nafter})")
    A("s_mov_b32 s68, 0x3f3f3f3f"); A("s_mov_b32 s69, 0x3f3f3f3f")
    def ghcheck():
        tagcheck(GQD, P)
        A(f"v_cmp_ne_u32 s[90:91], v{P}, v{vEp}")
        A("s_and_b64 s[90:91], s[90:91], s[68:69]")
    ghcheck()
    A("s_cbranch_scc0 L_gh_ok")
    if nostore: A("s_branch L_gh_ok")
    A("s_mov_b32 s65, 0")
    A("L_gh_loop:")
    gh_load()
    A("s_waitcnt vmcnt(0)")
    ghcheck()
    A("s_cbranch_scc0 L_gh_ok")
    A("s_add_u32 s65, s65, 1")
    A(f"s_cmp_lt_u32 s65, {SPIN_CAP}")
    A("s_cbranch_scc1 L_gh_loop")
    A("L_gh_ok:")
    untag(GQD, 4)
    A(f"v_permlane32_swap_b32 v{GQD}, v{GQD+2}")
    A(f"v_permlane32_swap_b32 v{GQD+1}, v{GQD+3}")
    A(f"v_add_f32 v{GQD}, v{GQD}, v{GQD+2}")
    A(f"v_add_f32 v{GQD+1}, v{GQD+1}, v{GQD+3}")
    A(f"v_permlane16_swap_b32 v{GQD}, v{GQD+1}")
    A(f"v_add_f32 v{GQD}, v{GQD}, v{GQD+1}")
    A(f"v_add_f32_dpp v{GQD}, v{GQD}, v{GQD} row_ror:8 {DPPM}")
    bf16r(A, GQD, GQD)
    A(f"v_mul_f32 v{GQD+1}, 0xbfb8aa3b, v{GQD}")
    A(f"v_exp_f32 v{GQD+1}, v{GQD+1}")
    A(f"v_add_f32 v{GQD+1}, 1.0, v{GQD+1}")
    A(f"v_rcp_f32 v{GQD+1}, v{GQD+1}")
    A(f"v_mul_f32 v{GQD}, v{GQD}, v{GQD+1}")
    A(f"v_cvt_pk_bf16_f32 v{GQD}, v{GQD}, v{GQD}")
    A("v_and_b32 v11, 7, v10")
    A("v_lshl_add_u32 v11, v11, 2, v9")
    A("v_lshlrev_b32 v11, 1, v11")
    A("s_mov_b32 exec_lo, 0x003f003f"); A("s_mov_b32 exec_hi, 0x003f003f")
    A(f"ds_write_b16 v11, v{GQD} offset:{HB + 8*HBP}")
    A("s_mov_b64 exec, -1")
    lds_flag(CNT + 8, GQD + 1)
    A(f"{L}:")
    kmore(32 - kn[0])
    stamp("k31_iss")
    spin_lds(CNT + 16, 0 if (nosvc or nogather) else 1, "q")
    A("v_lshlrev_b32 v11, 4, v10")
    A(f"ds_read_b128 v[{Q}:{Q+3}], v11 offset:{QS}")
    A("v_mov_b32 v12, 0")
    A(f"ds_read_b32 v{vEp}, v12 offset:{CNT+24}")
    A("s_waitcnt lgkmcnt(0)")
    A(f"v_readfirstlane_b32 s{sE}, v{vEp}")
    stamp("q_ready")
    A.c("K phase")
    ready.add("q")
    run_consumers()
    while any(f"k{t}" in pending for t in range(16)):
        drain_to([n for n in pending if n.startswith("k")][0])
    treduce(A, P, None, R0)
    ready.add("q2")
    vn = [0]
    def vmore(w):
        viss(vn[0], w); vn[0] += 1
        auxstep(RV, w)
    while any(n.startswith("k") for n in pending):
        run_consumers()
        if not any(n.startswith("k") for n in pending): break
        if vn[0] < 16: vmore(WV)
        else: drain_to([n for n in pending if n.startswith("k")][0])
    treduce(A, P, None, R1)
    stamp("k_done")
    while vn[0] < 32 and vm.outstanding() < WV: vmore(WV)
    A(f"v_cvt_pk_bf16_f32 v{P}, v{R0}, v{R1}")
    A(f"v_lshlrev_b32 v{R0}, 16, v{P}")
    A(f"v_and_b32 v{R1}, 0xffff0000, v{P}")
    A(f"v_mul_f32 v{R0}, 0x3db504f3, v{R0}")
    A(f"v_mul_f32 v{R1}, 0x3db504f3, v{R1}")
    A(f"v_cvt_pk_bf16_f32 v{P}, v{R0}, v{R1}")
    A(f"v_lshlrev_b32 v{R0}, 16, v{P}")
    A(f"v_and_b32 v{R1}, 0xffff0000, v{P}")
    A(f"v_max_f32 v{P}, v{R0}, v{R1}")
    wave_reduce(A, P, "v_max_f32", 65)
    A(f"v_subrev_f32 v{R0}, s65, v{R0}")
    A(f"v_subrev_f32 v{R1}, s65, v{R1}")
    A(f"v_mul_f32 v{R0}, 0x3fb8aa3b, v{R0}")
    A(f"v_mul_f32 v{R1}, 0x3fb8aa3b, v{R1}")
    A(f"v_exp_f32 v{R0}, v{R0}")
    A(f"v_exp_f32 v{R1}, v{R1}")
    A(f"v_cvt_pk_bf16_f32 v{P}, v{R0}, v{R1}")
    A(f"v_and_b32 v{PL0}, 0xffff, v{P}")
    A(f"v_lshlrev_b32 v{PH0}, 16, v{P}")
    A(f"v_lshrrev_b32 v{PL1}, 16, v{P}")
    A(f"v_and_b32 v{PH1}, 0xffff0000, v{P}")
    A(f"v_add_f32 v{P+1}, v{R0}, v{R1}")
    wave_reduce(A, P + 1, "v_add_f32", 66)
    A(f"v_mov_b32 v{P+2}, s65")
    A(f"v_mov_b32 v{P+3}, s66")
    A(f"v_lshlrev_b32 v11, 3, v7")
    A(f"ds_write_b64 v11, v[{P+2}:{P+3}] offset:{ML}")
    lds_flag(CNT, P + 4)
    zero(A, accA, 8)
    spin_lds(CNT + 8, 0 if (nosvc or nogather) else 1, "h")
    A(f"v_mul_u32_u24 v12, {HBP}, v10")
    A("v_lshl_add_u32 v12, v9, 4, v12")
    A(f"ds_read_b128 v[{P}:{P+3}], v12 offset:{HB}")
    if "w2t" not in done: drain_to("w22")
    assert "w2t" in done
    A("s_waitcnt lgkmcnt(0)")
    for nt in range(4): A(f"v_mfma_f32_16x16x32_bf16 v[{D+4*nt}:{D+4*nt+3}], v[{P}:{P+3}], v[{Wr+4*nt}:{Wr+4*nt+3}], 0")
    done.add("ffn")
    ready.add("p")
    stamp("p_done")
    run_consumers()
    A.c("V phase")
    A(f"s_lshl_b32 s67, s{sB}, 6")
    A(f"s_add_u32 s67, s67, s{sP}")
    def ml_publish():
        if noml: return
        L = only_wave(0)
        spin_lds(CNT, 8, "ml")
        A("v_and_b32 v12, 7, v1")
        A("v_lshlrev_b32 v12, 3, v12")
        A(f"ds_read_b64 v[{P+6}:{P+7}], v12 offset:{ML}")
        A("s_waitcnt lgkmcnt(0)")
        A(f"v_mov_b32 v{P+8}, v{P+6}")
        for d in ("quad_perm:[1,0,3,2]", "quad_perm:[2,3,0,1]", "row_half_mirror"):
            A(f"v_max_f32_dpp v{P+8}, v{P+8}, v{P+8} {d} {DPPM}")
        A(f"v_sub_f32 v{P+6}, v{P+6}, v{P+8}")
        A(f"v_mul_f32 v{P+6}, 0x3fb8aa3b, v{P+6}")
        A(f"v_exp_f32 v{P+6}, v{P+6}")
        A(f"v_mul_f32 v{P+9}, v{P+7}, v{P+6}")
        for d in ("quad_perm:[1,0,3,2]", "quad_perm:[2,3,0,1]", "row_half_mirror"):
            A(f"v_add_f32_dpp v{P+9}, v{P+9}, v{P+9} {d} {DPPM}")
        A(f"v_mov_b32 v{P+10}, s{sE}")
        A(f"v_not_b32 v{P+11}, v{P+10}")
        A("s_lshl_b32 s65, s67, 4")
        A(f"s_add_u32 s65, s65, {WS_ML}")
        A("s_mov_b64 exec, 1")
        A(f"buffer_store_dwordx4 v[{P+8}:{P+11}], v11, s[{WS_}:{WS_+3}], s65 offen {STF}")
        A("s_mov_b64 exec, -1")
        A(f"{L}:")
    def pm_load():
        A("s_xor_b32 s65, s67, 1")
        A("s_lshl_b32 s65, s65, 4")
        A(f"s_add_u32 s26, s65, {WS_ML}")
        A("v_mov_b32 v11, 0")
        L = only_wave(0)
        A(f"buffer_load_dwordx4 v[{P+12}:{P+15}], v11, s[{WS_}:{WS_+3}], s26 offen sc1")
        A(f"{L}:")
    published = [False]; pmdone = [False]
    while vn[0] < 32:
        if vn[0] >= VML and not published[0]:
            ml_publish(); published[0] = True
        if vn[0] >= PMAT and not pmdone[0]:
            pm_load(); pmdone[0] = True; n_pm = len(vm.log)
        run_consumers()
        vmore(WEND if vn[0] >= VEND else WV)
    if not published[0]: ml_publish()
    while aux:
        name, fn, cond = aux.pop(0)
        assert cond is None or cond()
        issue(fn, name, WEND if VEND < 99 else WV)
    if not pmdone[0]:
        pm_load(); n_pm = len(vm.log)
    while any(n.startswith(("v", "wo")) and n in consumers for n in pending):
        drain_to([n for n in pending if n.startswith(("v", "wo")) and n in consumers][0])
    stamp("v_done")
    if notail:
        A("s_waitcnt vmcnt(0)")
        A("s_branch L_main_end")
    A.c("tail")
    greduce(A, accA)
    A(f"v_cvt_pk_bf16_f32 v{accA}, v{accA}, v{accA+1}")
    A(f"ds_write_b32 v14, v{accA} offset:{OB}")
    A(f"v_mul_u32_u24 v12, {OBP}, v10")
    A("v_lshl_add_u32 v12, v9, 4, v12")
    L = only_wave(0)
    A(f"s_waitcnt vmcnt({min(len(vm.log) - n_pm, 63)})")
    A(f"v_readfirstlane_b32 s65, v{P+14}")
    A(f"s_cmp_eq_u32 s65, s{sE}")
    A("s_cbranch_scc1 L_pm_ok")
    A("s_mov_b32 s66, 0")
    A("L_pm_loop:")
    A(f"buffer_load_dwordx4 v[{P+12}:{P+15}], v11, s[{WS_}:{WS_+3}], s26 offen sc1")
    A("s_waitcnt vmcnt(0)")
    A(f"v_readfirstlane_b32 s65, v{P+14}")
    A("s_add_u32 s66, s66, 1")
    A(f"s_cmp_ge_u32 s66, {SPIN_CAP}")
    A("s_cbranch_scc1 L_pm_ok")
    A(f"s_cmp_lg_u32 s65, s{sE}")
    A("s_cbranch_scc1 L_pm_loop")
    A("L_pm_ok:")
    A(f"ds_write_b64 v11, v[{P+12}:{P+13}] offset:{ML+64}")
    A(f"{L}:")
    A("s_waitcnt lgkmcnt(0)")
    A("s_barrier")
    stamp("b3")
    AF = TLO
    A(f"ds_read_b64 v[{P+8}:{P+9}], v15 offset:{ML}")
    for kc in range(4): A(f"ds_read_b128 v[{AF+4*kc}:{AF+4*kc+3}], v12 offset:{OB + kc*64}")
    A("v_lshrrev_b32 v11, 2, v1")
    A("v_lshl_add_u32 v11, v7, 4, v11")
    A("v_lshrrev_b32 v14, 1, v11")
    A("v_lshlrev_b32 v14, 11, v14")
    A("v_and_b32 v11, 1, v11")
    A("v_lshl_add_u32 v14, v11, 4, v14")
    A(f"s_lshl_b32 s87, s{sB}, 17")
    A(f"s_lshl_b32 s66, s{sP}, 5")
    A("s_add_u32 s87, s87, s66")
    A("s_waitcnt lgkmcnt(0)")
    sc = []
    sc.append(f"v_mov_b32 v{P+10}, v{P+8}")
    for d in ("quad_perm:[1,0,3,2]", "quad_perm:[2,3,0,1]", "row_half_mirror", "row_mirror"):
        sc.append(f"v_max_f32_dpp v{P+10}, v{P+10}, v{P+10} {d} {DPPM}")
    sc.append(f"v_sub_f32 v{P+8}, v{P+8}, v{P+10}")
    sc.append(f"v_mul_f32 v{P+8}, 0x3fb8aa3b, v{P+8}")
    sc.append(f"v_exp_f32 v{P+8}, v{P+8}")
    sc.append(f"v_mul_f32 v{P+9}, v{P+9}, v{P+8}")
    for d in ("quad_perm:[1,0,3,2]", "quad_perm:[2,3,0,1]", "row_half_mirror", "row_mirror"):
        sc.append(f"v_add_f32_dpp v{P+9}, v{P+9}, v{P+9} {d} {DPPM}")
    sc.append(f"v_rcp_f32 v{P+9}, v{P+9}")
    sc.append(f"v_cmp_gt_u32 s[70:71], 8, v10")
    sc.append(f"v_cmp_eq_u32 s[72:73], 8, v10")
    sc.append(f"v_mul_f32 v{P+8}, v{P+8}, v{P+9}")
    sc.append(f"v_cndmask_b32 v{P+8}, 0, v{P+8}, s[70:71]")
    sc.append(f"v_cndmask_b32 v{P+8}, v{P+8}, 1.0, s[72:73]")
    sc.append(f"v_lshlrev_b32 v11, 2, v10")
    sc.append(f"ds_write_b32 v11, v{P+8} offset:{SC}")
    sc.append(f"v_lshlrev_b32 v11, 4, v9")
    sc.append(f"ds_read_b128 v[{P}:{P+3}], v11 offset:{SC}")
    mf = []
    for kc in range(4):
        for nt in range(4):
            mf.append(f"v_mfma_f32_16x16x32_bf16 v[{D+4*nt}:{D+4*nt+3}], v[{AF+4*kc}:{AF+4*kc+3}], v[{woreg(4*kc)+4*nt}:{woreg(4*kc)+4*nt+3}], v[{D+4*nt}:{D+4*nt+3}]")
    k = 0
    for m in mf:
        A(m)
        for _ in range(2):
            if k < len(sc): A(sc[k]); k += 1
    while k < len(sc): A(sc[k]); k += 1
    A("s_waitcnt lgkmcnt(0)")
    Y = P + 4
    for nt in range(4):
        A(f"v_mul_f32 v{Y+nt}, v{P}, v{D+4*nt}")
        for r in range(1, 4): A(f"v_fmac_f32 v{Y+nt}, v{P+r}, v{D+4*nt+r}")
    A(f"v_permlane32_swap_b32 v{Y}, v{Y+2}")
    A(f"v_permlane32_swap_b32 v{Y+1}, v{Y+3}")
    A(f"v_add_f32 v{Y}, v{Y}, v{Y+2}")
    A(f"v_add_f32 v{Y+1}, v{Y+1}, v{Y+3}")
    A(f"v_permlane16_swap_b32 v{Y}, v{Y+1}")
    A(f"v_add_f32 v{Y}, v{Y}, v{Y+1}")
    def ystore():
        for e in range(1, 4): A(f"v_mov_b32_dpp v{Y+e}, v{Y} quad_perm:[{e},{e},{e},{e}] {DPPM}")
        for e in range(4): A(f"v_perm_b32 v{P+8+e}, v{Y+e}, v{vEp}, s{SEL_INS+e}")
        A("s_mov_b32 exec_lo, 0x11111111"); A("s_mov_b32 exec_hi, 0x11111111")
        A(f"buffer_store_dwordx4 v[{P+8}:{P+11}], v14, s[{WS_}:{WS_+3}], s87 offen {STF}")
        A("s_mov_b64 exec, -1")
    if not YHO:
        ystore()
    else:
        A(f"s_cmp_lg_u32 s{sW}, 0")
        A("s_cbranch_scc1 L_y_w")
        A("v_lshlrev_b32 v11, 2, v1")
        A(f"ds_write_b32 v11, v{Y} offset:{HLOC}")
        lds_flag(CNT + 32, Y + 1)
        A("s_branch L_y_done")
        A("L_y_w:")
        ystore()
        A(f"s_cmp_lg_u32 s{sW}, 1")
        A("s_cbranch_scc1 L_y_done")
        spin_lds(CNT + 32, 1, "yh")
        A("v_lshlrev_b32 v11, 2, v1")
        A(f"ds_read_b32 v{Y}, v11 offset:{HLOC}")
        A("v_subrev_u32 v14, 16384, v14")
        A("s_waitcnt lgkmcnt(0)")
        ystore()
        A("L_y_done:")
    stamp("y_sent")
    if nofin: A("s_branch L_main_end")
    A(f"s_cmp_lg_u32 s{sW}, 0")
    A("s_cbranch_scc1 L_fin_skip")
    A("s_lshl_b32 s65, s67, 11")
    A("s_mov_b64 s[66:67], -1")
    A("s_mov_b64 s[68:69], -1")
    A("s_mov_b32 s26, 0")
    FA, FB = P, P + 4
    def fin_issue():
        A("s_mov_b64 exec, s[66:67]")
        A(f"buffer_load_dwordx4 v[{FA}:{FA+3}], v8, s[{WS_}:{WS_+3}], s65 offen sc1")
        A("s_mov_b64 exec, s[68:69]")
        A(f"buffer_load_dwordx4 v[{FB}:{FB+3}], v8, s[{WS_}:{WS_+3}], s65 offen offset:1024 sc1")
        A("s_mov_b64 exec, -1")
    if FPOLL == 2: fin_issue()
    A("L_fin_loop:")
    if FPOLL == 2 and PSL: A(f"s_sleep {PSL}")
    fin_issue()
    A("s_waitcnt vmcnt(2)" if FPOLL == 2 else "s_waitcnt vmcnt(0)")
    tagcheck(FA, P + 8); tagcheck(FB, P + 10)
    A(f"v_cmp_ne_u32 s[66:67], v{P+8}, v{vEp}")
    A(f"v_cmp_ne_u32 s[68:69], v{P+10}, v{vEp}")
    A("s_or_b64 s[90:91], s[66:67], s[68:69]")
    A("s_cbranch_scc0 L_fin_done")
    if sleep: A(f"s_sleep {sleep}")
    A("s_add_u32 s26, s26, 1")
    A(f"s_cmp_lt_u32 s26, {SPIN_CAP}")
    A("s_cbranch_scc1 L_fin_loop")
    A("L_fin_done:")
    if FPOLL == 2: A("s_waitcnt vmcnt(0)")
    stamp("polled")
    untag(FA, 8)
    for e in range(4): A(f"v_add_f32 v{FA+e}, v{FA+e}, v{FB+e}")
    A(f"v_permlane32_swap_b32 v{FA}, v{FA+2}")
    A(f"v_permlane32_swap_b32 v{FA+1}, v{FA+3}")
    A(f"v_add_f32 v{FA}, v{FA}, v{FA+2}")
    A(f"v_add_f32 v{FA+1}, v{FA+1}, v{FA+3}")
    A(f"v_permlane16_swap_b32 v{FA}, v{FA+1}")
    A(f"v_add_f32 v{FA}, v{FA}, v{FA+1}")
    for d in ("quad_perm:[2,3,0,1]", "row_ror:4", "row_ror:8"):
        A(f"v_add_f32_dpp v{FA}, v{FA}, v{FA} {d} {DPPM}")
    A(f"v_lshlrev_b32 v{vX}, 16, v{vX}")
    A(f"v_add_f32 v{FA}, v{FA}, v{vX}")
    A(f"v_cvt_pk_bf16_f32 v{FA}, v{FA}, v{FA}")
    A("v_and_b32 v11, 1, v10")
    A("v_lshl_add_u32 v11, v11, 2, v9")
    A(f"s_lshl_b32 s65, s{sP}, 3")
    A(f"s_lshl_b32 s66, s{sB}, 9")
    A("s_add_u32 s65, s65, s66")
    A("v_add_u32 v11, s65, v11")
    A("v_lshlrev_b32 v11, 1, v11")
    A("s_mov_b32 s66, 0x00030003")
    A("s_mov_b32 exec_lo, s66")
    A("s_mov_b32 exec_hi, s66")
    A(f"global_store_short v11, v{FA}, s[20:21] {OUTF}")
    A("s_mov_b64 exec, -1")
    A("L_fin_skip:")
    if stamps:
        stamp("end")
        A("s_waitcnt lgkmcnt(0)")
        for i in range(len(STAMP_NAMES)): A(f"v_writelane_b32 v255, s{STREGS[i]}, {i}")
        A(f"s_lshl_b32 s68, s{sW}, 16")
        A("s_lshl_b32 s69, s2, 8")
        A("s_add_u32 s68, s68, s69")
        A(f"s_add_u32 s68, s68, {WS_ST}")
        A("v_lshlrev_b32 v12, 2, v1")
        A(f"buffer_store_dword v255, v12, s[{WS_}:{WS_+3}], s68 offen")
    A("L_main_end:")
    A("s_endpgm")
    return A

def build(**kw):
    m = gen_main(**kw)
    s = HEADER
    s += f"; @launch grid=(256,1,1) block=(512,1,1) lds={LDS_TOTAL}\n"
    s += '.amdgcn_target "amdgcn-amd-amdhsa--gfx950"\n.text\n'
    nm = NAME + "_kernel"
    s += f".globl {nm}\n.p2align 8\n.type {nm},@function\n{nm}:\n" + m.text()
    s += '.section .rodata,"a"\n.p2align 6\n'
    s += kd(nm, 256, 102)
    return s

if __name__ == "__main__":
    out = sys.argv[1] if len(sys.argv) > 1 else f"cdna_kernels/{NAME}.s"
    kw = {}
    for a in sys.argv[2:]:
        if "=" in a:
            k, v = a.split("=", 1)
            kw[k] = int(v) if v.lstrip("-").isdigit() else v
    if "stamps" in sys.argv: kw["stamps"] = True
    open(out, "w").write(build(**kw))
    if STAMP_NAMES: open(out + ".stamps", "w").write(",".join(STAMP_NAMES))
    print("written", out)
```
